```python
import torch

def _softmax(x, axis=-1):
    return torch.softmax(x, dim=axis)
def _gelu(x):
    return torch.nn.functional.gelu(x, approximate="tanh")
def _silu(x):
    return torch.nn.functional.silu(x)
def _sigmoid(x):
    return torch.sigmoid(x)
def _layernorm(x, axis=-1, eps=1e-5):
    m = x.mean(dim=axis, keepdim=True)
    v = x.var(dim=axis, keepdim=True, unbiased=False)
    return (x - m) / torch.sqrt(v + eps)
def _scatter_add(tgt, idx, src, axis=0):
    return tgt.clone().index_add_(axis, idx, src)
def _segment_sum(src, seg, n):
    out = torch.zeros((n,) + src.shape[1:], dtype=src.dtype)
    return out.index_add_(0, seg, src)
def _pad(x, pw):
    flat = tuple(v for pair in reversed(pw) for v in pair)
    return torch.nn.functional.pad(x, flat)

kernel_name = 'standalone__gqa_softmax__near_ridge'

def setup_inputs():

    _w = (lambda a: (lambda t: t.to(torch.bfloat16) if t.is_floating_point() else t)(torch.as_tensor(a)))
    B, Hq, Hkv, Sq, Sk, D = 8, 32, 32, 384, 1024, 192
    return {
        "q": _w((lambda *s: torch.randn(*s, dtype=torch.bfloat16) * 0.8)(B, Hq, Sq, D)),
        "k": _w((lambda *s: torch.randn(*s, dtype=torch.bfloat16) * 0.8)(B, Hkv, Sk, D)),
        "v": _w((lambda *s: torch.randn(*s, dtype=torch.bfloat16) * 0.05)(B, Hkv, Sk, D)),
    }

def reference(q, k, v):
    B, Hq, Sq, D = q.shape
    Hkv = k.shape[1]
    rep = Hq // Hkv
    k = (lambda x, n, axis: torch.repeat_interleave(x, n, dim=axis))(k, rep, axis=1)
    v = (lambda x, n, axis: torch.repeat_interleave(x, n, dim=axis))(v, rep, axis=1)
    scale = D ** -0.5
    scores = torch.einsum("bhqd,bhkd->bhqk", q, k) * scale
    p = _softmax(scores, axis=-1)
    return torch.einsum("bhqk,bhkd->bhqd", p, v)
```

```python
import re

REG_RE = re.compile(r"^(-?)(?:abs\()?([vas])(?:\[(\d+):(\d+)\]|(\d+))\)?$")
TRANS = ("v_exp_f32", "v_log_f32", "v_rcp_f32", "v_rsq_f32", "v_sqrt_f32")
NO_DST_S = ("s_cmp", "s_cbranch", "s_waitcnt", "s_barrier", "s_nop", "s_branch", "s_endpgm", "s_bitcmp", "s_setprio")


def regs_of(tok):
    tok = tok.strip()
    if tok in ("m0", "scc"):
        return [tok]
    if tok == "vcc":
        return ["vcc"]
    if tok == "exec":
        return ["exec"]
    m = REG_RE.match(tok)
    if not m:
        return []
    f = m.group(2)
    if m.group(3) is not None:
        return [f"{f}{i}" for i in range(int(m.group(3)), int(m.group(4)) + 1)]
    return [f"{f}{m.group(5)}"]


class Ins:
    def __init__(self, text, **tags):
        self.text = text
        self.tags = tags
        t = text.split(";")[0].strip()
        self.is_label = t.endswith(":")
        self.is_dir = t.startswith(".")
        self.op = "" if (self.is_label or self.is_dir or not t) else t.split()[0]
        rest = t[len(self.op):].strip() if self.op else ""
        ops = [x.strip() for x in rest.split(",")] if rest else []
        mods = []
        if ops:
            parts = ops[-1].split()
            ops[-1] = parts[0]
            mods = parts[1:]
        self.ops, self.mods = ops, mods
        op = self.op
        R = [regs_of(x) for x in ops]
        flat = lambda xs: [r for x in xs for r in x]
        self.w, self.r = [], []
        self.kind = "none"
        if not op:
            return
        if op.startswith("v_mfma"):
            self.kind = "mfma"
            self.w = R[0]
            self.a, self.b, self.c = R[1], R[2], R[3]
            self.r = flat(R[1:])
            self.passes = 8 if "32x32x16" in op else (4 if "16x16x32" in op else 2)
        elif op.startswith("v_permlane") and "swap" in op:
            self.kind = "valu"
            self.w = flat(R)
            self.r = flat(R)
        elif op.startswith("v_"):
            self.kind = "trans" if op.startswith(TRANS) else "valu"
            self.w = R[0]
            self.r = flat(R[1:])
            if op.startswith("v_cndmask") and len(ops) == 3:
                self.r.append("vcc")
        elif op.startswith("ds_read") or op.startswith("ds_bpermute"):
            self.kind = "ds"
            self.w = R[0]
            self.r = flat(R[1:])
        elif op.startswith("ds_write"):
            self.kind = "ds"
            self.r = flat(R)
        elif op.startswith("buffer_load"):
            self.kind = "vmem"
            if "lds" in mods:
                self.r = flat(R) + ["m0"]
                self.dma = True
            else:
                self.w = R[0]
                self.r = flat(R[1:])
        elif op.startswith(("buffer_store", "buffer_atomic")):
            self.kind = "vmem"
            self.r = flat(R)
            self.store_data = R[0]
        elif op.startswith(("s_load", "s_memtime", "s_memrealtime")):
            self.kind = "smem"
            self.w = R[0]
            self.r = flat(R[1:])
        elif op == "s_waitcnt":
            self.kind = "wait"
        elif op == "s_barrier":
            self.kind = "barrier"
        elif op == "s_nop":
            self.kind = "nop"
        elif op.startswith(("s_cbranch", "s_branch", "s_endpgm")):
            self.kind = "branch"
        elif op.startswith("s_"):
            self.kind = "salu"
            if op.startswith(NO_DST_S):
                self.r = flat(R)
            else:
                self.w = R[0]
                self.r = flat(R[1:])
                if "saveexec" in op:
                    self.w = self.w + ["exec"]
        else:
            raise ValueError("unknown instruction: " + text)

    @property
    def states(self):
        if self.kind == "none":
            return 0
        if self.kind == "nop":
            return int(self.ops[0]) + 1
        return 1

    @property
    def vslots(self):
        if self.kind == "trans":
            return 2
        if self.kind in ("valu", "ds", "vmem"):
            return 1
        return 0

    def waits(self):
        t = self.text.split(";")[0]
        vm = re.search(r"vmcnt\((\d+)\)", t)
        lg = re.search(r"lgkmcnt\((\d+)\)", t)
        return (int(vm.group(1)) if vm else None, int(lg.group(1)) if lg else None)


XDL_TO_VALU = {2: 5, 4: 8, 8: 12}
XDL_C_OVERLAP = {2: 4, 4: 6, 8: 10}
XDL_C_SAME = {2: 2, 4: 0, 8: 0}
XDL_C_WAR = {2: 1, 4: 3, 8: 7}


def verify(trace, name=""):
    errs = []
    pos = 0
    lastw = {}
    lastc = {}
    laststore = {}
    lds_q, vm_q = [], []
    smem_out = set()
    retired_fills, published = set(), set()
    slot_content = {}
    reads_done_at_barrier = {}
    pending_reads = {}
    barriers = 0

    def err(i, ins, msg):
        errs.append(f"{name}[{i}] {ins.text.strip()} :: {msg}")

    for i, (ins, tile) in enumerate(trace):
        k = ins.kind
        if k == "none":
            continue
        touched = set(ins.r) | set(ins.w)
        for q, nm in ((lds_q, "lgkmcnt"), (vm_q, "vmcnt")):
            for e in q:
                hit = touched & set(e["w"])
                if hit and not (ins.tags.get("dummy") and e.get("dummy")):
                    err(i, ins, f"touches {sorted(hit)[:3]} with outstanding {nm} op: {e['t']}")
        if touched & smem_out:
            err(i, ins, f"touches outstanding smem dst {sorted(touched & smem_out)}")

        def dist(r):
            return pos - lastw[r][0] - 1

        for r in ins.r:
            if r not in lastw:
                if r[0] in "vas" and r not in ("s0", "s1", "s2", "v0", "vcc", "scc"):
                    err(i, ins, f"reads never-written {r}")
                continue
            p, wk, wi = lastw[r]
            d = dist(r)
            if wk == "mfma":
                n = wi.passes
                if k == "mfma":
                    if r in ins.a or r in ins.b:
                        if d < XDL_TO_VALU[n]:
                            err(i, ins, f"MFMA D->A/B {r} dist {d}")
                    elif ins.c == wi.w and ins.passes == n:
                        if d < XDL_C_SAME[n]:
                            err(i, ins, f"MFMA D->C same {r} dist {d}")
                    elif d < XDL_C_OVERLAP[n]:
                        err(i, ins, f"MFMA D->C overlap {r} dist {d}")
                elif d < XDL_TO_VALU[n]:
                    err(i, ins, f"MFMA D->read {r} dist {d}")
            if wk in ("valu", "trans"):
                if k == "mfma" and d < 2:
                    err(i, ins, f"VALU->MFMA {r} dist {d}")
                if wk == "trans" and k == "valu" and d < 1:
                    err(i, ins, f"trans->VALU {r} dist {d}")
                if ins.op.startswith("v_permlane") and d < 2:
                    err(i, ins, f"VALU->permlane {r} dist {d}")
                if ins.op.startswith(("v_readfirstlane", "v_readlane")) and r[0] == "v" and d < 1:
                    err(i, ins, f"VALU->readlane {r} dist {d}")
                if (r[0] == "s" or r == "vcc") and k == "vmem" and d < 5:
                    err(i, ins, f"VALU sgpr->VMEM {r} dist {d}")
                if (r[0] == "s" or r == "vcc") and k in ("valu", "trans") and d < 2:
                    err(i, ins, f"VALU sgpr->VALU {r} dist {d}")
                if (r[0] == "s" or r == "vcc") and k == "salu" and d < 1:
                    err(i, ins, f"VALU sgpr->SALU {r} dist {d} (padded by policy)")
            if r == "m0" and wk == "salu" and d < 1:
                err(i, ins, "m0 write -> DMA dist 0")
        for r in ins.w:
            if r in lastw and lastw[r][1] == "mfma" and k != "mfma":
                n = lastw[r][2].passes
                if dist(r) < XDL_TO_VALU[n]:
                    err(i, ins, f"MFMA D->overwrite {r} dist {dist(r)}")
            if k in ("valu", "trans") and r in lastc:
                p, n = lastc[r]
                if pos - p - 1 < XDL_C_WAR[n]:
                    err(i, ins, f"MFMA C read -> VALU write {r}")
            if r in laststore and pos - laststore[r] - 1 < 2:
                err(i, ins, f"wide store data overwritten {r}")

        if k == "wait":
            vm, lg = ins.waits()
            if vm is not None:
                while len(vm_q) > vm:
                    e = vm_q.pop(0)
                    if "fill" in e:
                        retired_fills.add(e["fill"])
            if lg is not None:
                if smem_out and lg != 0:
                    err(i, ins, "counted lgkmcnt with SMEM outstanding")
                while len(lds_q) > lg:
                    e = lds_q.pop(0)
                    if "need" in e:
                        pending_reads[e["need"]] -= 1
                if lg == 0:
                    smem_out.clear()
        elif k == "barrier":
            barriers += 1
            published |= retired_fills
            for key, n in pending_reads.items():
                if n == 0:
                    reads_done_at_barrier.setdefault(key, barriers)
        elif k == "ds":
            e = {"w": ins.w, "t": ins.text.strip()}
            need = ins.tags.get("need")
            if need is not None:
                key = (need[0], need[1] + tile)
                own = ins.tags.get("own")
                if not ins.tags.get("garbage_ok"):
                    missing = [p for p in range(3) if (key, p) not in (retired_fills if own else published)]
                    if missing:
                        err(i, ins, f"reads {key} before it is visible")
                    if key not in slot_content.values():
                        err(i, ins, f"reads {key} after its slot was refilled")
                e["need"] = key
                pending_reads[key] = pending_reads.get(key, 0) + 1
                reads_done_at_barrier.pop(key, None)
            lds_q.append(e)
            if len(lds_q) > 15:
                err(i, ins, "more than 15 LDS ops outstanding")
        elif k == "vmem":
            e = {"w": ins.w, "t": ins.text.strip(), "dummy": ins.tags.get("dummy")}
            fill = ins.tags.get("fill")
            if fill is not None:
                key = (fill[0], fill[1] + tile)
                slot = fill[3](tile)
                e["fill"] = (key, fill[2])
                old = slot_content.get(slot)
                if old is not None and old != key:
                    if old[0] == "Q":
                        if pending_reads.get(old, 1) != 0:
                            err(i, ins, f"DMA overwrites {old} before own reads completed")
                    elif old not in reads_done_at_barrier:
                        err(i, ins, f"DMA overwrites {old} (slot {slot}) without a barrier after its last read")
                slot_content[slot] = key
            vm_q.append(e)
            if len(vm_q) > 63:
                err(i, ins, "more than 63 VMEM ops outstanding")
            if hasattr(ins, "store_data") and len(ins.store_data) >= 3:
                for r in ins.store_data:
                    laststore[r] = pos
        elif k == "smem":
            smem_out |= set(ins.w)

        if k == "mfma":
            for r in ins.c:
                lastc[r] = (pos, ins.passes)
        for r in ins.w:
            lastw[r] = (pos + ins.states - 1, k, ins)
        pos += ins.states
    return errs


def gap_report(seq):
    cyc, over, cur = 0, [], None
    gaps = []
    for ins in seq:
        if ins.kind == "mfma":
            cur = []
            gaps.append(cur)
        elif ins.kind != "none" and cur is not None:
            cur.append(ins)
    for g, fill in enumerate(gaps):
        t = 4
        prev_valu = False
        for ins in fill:
            if ins.vslots:
                t = max(t, 8)
                if ins.kind in ("ds", "vmem") and prev_valu:
                    t += 8
                t += 4 * ins.vslots
                prev_valu = ins.kind in ("valu", "trans")
            else:
                t += 4 * ins.states
        if t > 16:
            over.append((g, t))
        cyc += max(16, t)
    return cyc, over
```

```python
HEADER = """; Kernarg layout for this problem (48 bytes, ptrs only, base s[0:1]):
; @launch grid=({grid},1,1) block=({block},1,1) lds={lds}
.amdgcn_target "amdgcn-amd-amdhsa--gfx950"
.text
.globl standalone__gqa_softmax__near_ridge_kernel
.p2align 8
.type standalone__gqa_softmax__near_ridge_kernel,@function
standalone__gqa_softmax__near_ridge_kernel:
"""
FOOTER = """.section .rodata,"a"
.p2align 6
.amdhsa_kernel standalone__gqa_softmax__near_ridge_kernel
  .amdhsa_next_free_vgpr {nvgpr}
  .amdhsa_next_free_sgpr {nsgpr}
  .amdhsa_accum_offset {accum}
  .amdhsa_group_segment_fixed_size 0
  .amdhsa_kernarg_size 48
  .amdhsa_user_sgpr_count 2
  .amdhsa_user_sgpr_kernarg_segment_ptr 1
  .amdhsa_system_sgpr_workgroup_id_x 1
{extra}.end_amdhsa_kernel
"""
```

```python
import math
import struct
import sys

from asmlib import Ins, verify, gap_report
from common import HEADER, FOOTER

M16 = "v_mfma_f32_16x16x32_bf16"
NT = 32
SLOT = 12576
RG = 3104
PRIV0, PRIVSZ = 50432, 28160
STG = 400

vT, vK, vV, vD = 0, 1, 2, 3
vL = 4
vT1, vT2 = 10, 11
vONE, vP, vB, vO = 12, 16, 40, 80
sW = 3
sQ, sK, sV, sO, sC = 12, 16, 20, 24, 28
sScale, sMask, sGoff, sM0, sCnt, sDel, sRd, sTmp, sTmp2 = 32, 33, 34, 35, 36, 37, 38, 39, 40
sHi, sLo, sFwd, sBack, sM0w, sPriv = 41, 42, 43, 44, 45, 46
sFlag, sFlag2 = 48, 50
sT0, sT1, sT2, sT3, sC0, sC1, sWs = 56, 58, 60, 62, 64, 66, 68


def f32(x):
    return "0x%08x" % struct.unpack("<I", struct.pack("<f", x))[0]


def v4(n): return f"v[{n}:{n+3}]"
def v2(n): return f"v[{n}:{n+1}]"
def s4(n): return f"s[{n}:{n+3}]"
def s2(n): return f"s[{n}:{n+1}]"
def P(qb): return vP + 4 * qb
def B(i): return vB + 4 * i
def Q(qb, ks): return f"a[{qb*24+ks*4}:{qb*24+ks*4+3}]"


def O(qb, db):
    if qb >= 3:
        return ("v", vO + 4 * ((qb - 3) * 12 + db))
    i = qb * 12 + db
    if i < 8:
        return ("v", vO + 144 + 4 * i)
    return ("a", 144 + 4 * (i - 8))


def O4(qb, db):
    f, n = O(qb, db)
    return f"{f}[{n}:{n+3}]"


class Cfg:
    L = 4
    ldpol = " nt"
    stpol = " nt"
    stamps = False
    bar_gap = 55
    prefetch = True
    hi = 2.0 ** 40
    lo = 2.0 ** -20
    force_slow = False


def kread(dst, kb, ks, rel, **kw):
    return Ins(f"ds_read_b128 {v4(dst)}, v{vK} offset:{kb*1536 + ks*64}", need=("K", rel), **kw)


def vread(dst, db, jj, **kw):
    return Ins(f"ds_read_b64_tr_b16 {v2(dst + 2*jj)}, v{vV} offset:{jj*1536 + db*32}", need=("V", 0), **kw)


class Gap:
    def __init__(self):
        self.sc, self.mem, self.valu, self.post = [], [], [], []

    def free(self):
        return 2 - sum(x.vslots for x in self.mem + self.valu) - len(self.post)

    def seq(self):
        return self.sc + self.mem + self.valu + self.post


def tile(cfg, dma, vm, last=False, loop_label=None):
    M = []
    k1 = [B(6), B(7), B(8), B(9), B(0), B(1)]
    rot = [B(2), B(3), B(4)]
    sblk = {}
    for kb in range(2):
        for qb in range(6):
            d = P(qb) if kb == 0 else rot[qb % 3]
            sblk[kb * 6 + qb] = d
            for ks in range(6):
                a = B(ks) if kb == 0 else k1[ks]
                M.append(Ins(f"{M16} {v4(d)}, {v4(a)}, {Q(qb, ks)}, {'0' if ks == 0 else v4(d)}"))
    ones_t = [B(2), B(9), B(0), B(1), B(0), B(1)]
    vblk = [B(5), B(6), B(7), B(8), B(3), B(4), B(5), B(2), B(6), B(7), B(8), B(9)]
    ones_at = {}

    def ones(qb):
        ones_at[qb] = len(M)
        M.append(Ins(f"{M16} {v4(ones_t[qb])}, {v4(vONE)}, {v4(P(qb))}, 0"))

    def pair(p):
        for qb in range(6):
            for db in (2 * p, 2 * p + 1):
                M.append(Ins(f"{M16} {O4(qb, db)}, {v4(vblk[db])}, {v4(P(qb))}, {O4(qb, db)}"))

    for qb in range(4):
        ones(qb)
    pair(0)
    ones(4)
    ones(5)
    for p in range(1, 6):
        pair(p)
    n = len(M)
    G = [Gap() for _ in range(n)]

    for c in range(12):
        kb, qb = divmod(c, 6)
        s = sblk[c]
        for r in range(4):
            G[6 * c + 8 + r].valu.append(Ins(f"v_exp_f32 v{s+r}, v{s+r}"))
        for h in range(2):
            G[6 * c + 12].valu.append(Ins(f"v_cvt_pk_bf16_f32 v{P(qb)+2*kb+h}, v{s+2*h}, v{s+2*h+1}"))
    for ks, g in zip(range(6), (0, 1, 2, 3, 31, 31)):
        G[g].mem.append(kread(k1[ks], 1, ks, 0))
    for db, g in enumerate((61, 67, 73, 79, 82, 84, 91, 93, 103, 105, 115, 117)):
        for jj in range(2):
            G[g].mem.append(vread(vblk[db], db, jj))
    for qb, g in enumerate((80, 80, 81, 81, 96, 96)):
        G[g].valu.append(Ins(f"v_add_f32 v{vL+qb}, v{vL+qb}, v{ones_t[qb]}"))
    if not last:
        for ks, g in zip(range(6), (126, 127, 128, 129, 130, 131)):
            G[g].mem.append(kread(B(ks), 0, ks, 1))

    bg = cfg.bar_gap
    G[bg].sc.append(Ins(f"s_waitcnt vmcnt({vm})"))
    G[bg].post.append(Ins("s_barrier"))

    chains = []
    if not last:
        chains.append((38, [Ins(f"s_cmp_eq_u32 s{sRd}, {10*SLOT}"),
                            Ins(f"s_cselect_b32 s{sDel}, s{sBack}, s{sFwd}"),
                            Ins(f"s_add_u32 s{sRd}, s{sRd}, s{sDel}")]))
        G[49].valu.append(Ins(f"v_add_u32 v{vK}, s{sDel}, v{vK}"))
        G[120].valu.append(Ins(f"v_add_u32 v{vV}, s{sDel}, v{vV}"))
    if dma:
        L = cfg.L
        for which, srd, g0 in (("K", sK, 86), ("V", sV, 107)):
            off = 0 if which == "K" else 1
            for p in range(3):
                g = g0 + (0, 8, 13)[p] if which == "K" else g0 + 3 * p
                G[g].mem.append(Ins(f"buffer_load_dwordx4 v{vD}, {s4(srd)}, s{sGoff} offen offset:{p*1024}{cfg.ldpol} lds",
                                    fill=(which, L, p, (lambda t, off=off: 2 * ((t + L) % 6) + off))))
        G[85].sc.append(Ins(f"s_mov_b32 m0, s{sM0}"))
        G[104].sc.append(Ins(f"s_add_u32 m0, s{sM0}, {SLOT}"))
        chains.append((118, [Ins(f"s_add_u32 s{sGoff}, s{sGoff}, 12288"),
                             Ins(f"s_cmp_eq_u32 s{sM0}, s{sM0w}"),
                             Ins(f"s_cselect_b32 s{sTmp}, s{sBack}, s{sFwd}"),
                             Ins(f"s_add_u32 s{sM0}, s{sM0}, s{sTmp}")]))
    if last:
        g = 100
        chk = [f"v_max3_f32 v{vT1}, v{vL}, v{vL+1}, v{vL+2}", f"v_min3_f32 v{vT2}, v{vL}, v{vL+1}, v{vL+2}",
               f"v_max3_f32 v{vT1}, v{vT1}, v{vL+3}, v{vL+4}", f"v_min3_f32 v{vT2}, v{vT2}, v{vL+3}, v{vL+4}",
               f"v_max_f32 v{vT1}, v{vT1}, v{vL+5}", f"v_min_f32 v{vT2}, v{vT2}, v{vL+5}",
               f"v_cmp_lt_f32 {s2(sFlag)}, s{sHi}, v{vT1}", f"v_cmp_gt_f32 {s2(sFlag2)}, s{sLo}, v{vT2}"]
        chk += [f"v_rcp_f32 v{vL+qb}, v{vL+qb}" for qb in range(6)]
        for x in chk:
            x = Ins(x)
            while G[g].free() < x.vslots or G[g].mem:
                g += 1
            G[g].valu.append(x)
        chains.append((g + 2, [Ins(f"s_or_b64 {s2(sFlag)}, {s2(sFlag)}, {s2(sFlag2)}")]))
    if loop_label:
        chains.append((140, [Ins(f"s_add_u32 s{sCnt}, s{sCnt}, 1"), Ins(f"s_cmp_lt_u32 s{sCnt}, {NT - cfg.L}")]))

    q = [(set(Ins(f"v_mov_b32 {v4(B(ks))}, 0").w), -20) for ks in range(6)]
    entry_wait = None
    for i in range(n + (0 if last else 1)):
        need = set(M[i % n].r)
        idx = max((j for j, (w, g) in enumerate(q) if w & need), default=None)
        if idx is not None:
            assert q[idx][1] < i - 1, f"read for MFMA {i} issued too late"
            vis = [j for j, (w, g) in enumerate(q) if g < i - 1]
            idx = max([idx] + [j for j in vis if q[j][1] <= i - 9])
            cnt = len(vis) - 1 - idx
            if i == 0:
                entry_wait = cnt
            else:
                assert not G[i - 1].sc, f"scalar slot of gap {i-1} taken"
                G[i - 1].sc.append(Ins(f"s_waitcnt lgkmcnt({cnt})"))
            q = q[idx + 1:]
        if i < n:
            q += [(set(x.w), i) for x in G[i].mem if x.kind == "ds"]
    assert entry_wait == 0

    for g, chain in chains:
        for x in chain:
            while G[g].sc:
                g += 1
            G[g].sc.append(x)
            g += 1
    if loop_label:
        G[n - 1].post.append(Ins(f"s_cbranch_scc1 {loop_label}"))

    def pad(prod, cons_gap, cons):
        def states():
            t = 0
            for g in range(prod, cons_gap + 1):
                if g > prod:
                    t += 1
                for x in G[g].seq():
                    if x is cons:
                        return t
                    t += x.states
            raise AssertionError
        for g in range(prod, cons_gap + 1):
            if states() < 8 and not G[g].sc:
                G[g].sc.append(Ins("s_nop 0"))
        for g in range(prod, cons_gap):
            while states() < 8 and G[g].sc[0].kind == "nop" and G[g].free() > G[g].sc[0].states - 1:
                G[g].sc[0] = Ins(f"s_nop {G[g].sc[0].states}")
        assert states() >= 8, (prod, cons_gap)

    for c in range(12):
        pad(6 * c + 5, 6 * c + 8, G[6 * c + 8].valu[0])
    for qb, g in enumerate((80, 80, 81, 81, 96, 96)):
        pad(ones_at[qb], g, [x for x in G[g].valu if x.w == [f"v{vL+qb}"]][0])

    out = []
    for m, g in zip(M, G):
        out.append(m)
        out += g.seq()
    return out


def lane_addrs(a, kbase, vbase):
    a(f"v_mbcnt_lo_u32_b32 v{vT}, -1, 0")
    a(f"v_mbcnt_hi_u32_b32 v{vT}, -1, v{vT}")
    a(f"v_and_b32 v{vT1}, 3, v{vT}")
    a(f"v_mul_u32_u24 v{vK}, {RG}, v{vT1}")
    a(f"v_lshlrev_b32 v{vV}, 3, v{vT1}")
    a(f"v_bfe_u32 v{vT1}, v{vT}, 2, 2")
    a(f"v_mul_u32_u24 v{vT2}, 384, v{vT1}")
    a(f"v_add_u32 v{vK}, v{vK}, v{vT2}")
    a(f"v_mul_u32_u24 v{vT2}, {RG}, v{vT1}")
    a(f"v_add_u32 v{vV}, v{vV}, v{vT2}")
    a(f"v_lshrrev_b32 v{vT1}, 4, v{vT}")
    a(f"v_lshl_add_u32 v{vK}, v{vT1}, 4, v{vK}")
    a(f"v_mul_u32_u24 v{vT2}, 384, v{vT1}")
    a(f"v_add_u32 v{vV}, v{vV}, v{vT2}")
    a(f"v_add_u32 v{vK}, {kbase}, v{vK}")
    a(f"v_add_u32 v{vV}, {vbase}, v{vV}")


def zero_acc(a):
    for qb in range(6):
        a(f"v_mov_b32 v{vL+qb}, 0")
    for qb in range(6):
        for db in range(12):
            f, n = O(qb, db)
            for r in range(4):
                a(f"v_mov_b32 v{n+r}, 0" if f == "v" else f"v_accvgpr_write_b32 a{n+r}, 0")


def prologue(cfg):
    out = []
    vmq = []

    def a(t, **k):
        x = Ins(t, **k)
        out.append(x)
        if x.kind == "vmem":
            vmq.append(k.get("vtag"))

    def wait_for(tag):
        last = max(i for i, t in enumerate(vmq) if t == tag)
        a(f"s_waitcnt vmcnt({len(vmq) - 1 - last})")
        del vmq[:last + 1]

    a("s_cmp_ge_u32 s2, 256")
    a("s_cbranch_scc1 L_end")
    a("s_load_dwordx4 s[4:7], s[0:1], 0")
    a("s_load_dwordx4 s[8:11], s[0:1], 16")
    if cfg.stamps:
        a(f"s_load_dwordx2 {s2(sWs)}, s[0:1], 40")
        a(f"s_memrealtime {s2(sT0)}")
    if cfg.prefetch:
        a(f"s_getpc_b64 {s2(sC)}")
        a("L_pc:")
        a(f"s_and_b32 s{sC+1}, s{sC+1}, 0xffff")
        a(f"s_mov_b32 s{sC+2}, L_slow-L_pc")
        a(f"s_mov_b32 s{sC+3}, 0x20000")
        a(f"v_lshlrev_b32 v{vT1}, 7, v0")
        a(f"buffer_load_dword v{vT2}, v{vT1}, {s4(sC)}, 0 offen", vtag="pf")
    a(f"v_lshrrev_b32 v{vK}, 6, v0")
    a(f"v_and_b32 v{vD}, 63, v0")
    a(f"v_readfirstlane_b32 s{sW}, v{vK}")
    a(f"v_lshlrev_b32 v{vD}, 4, v{vD}")
    a(f"s_mul_i32 s{sTmp}, s2, 147456")
    a(f"s_mul_i32 s{sTmp2}, s2, 393216")
    a(f"s_mul_i32 s{sGoff}, s{sW}, 3072")
    a(f"s_mul_i32 s{sM0}, s{sW}, {RG}")
    a(f"s_mul_i32 s{sCnt}, s{sW}, 36864")
    a(f"s_mov_b32 m0, s{sM0}")
    for r, n in ((sK, 393216), (sQ, 147456), (sV, 393216), (sO, 147456)):
        a(f"s_mov_b32 s{r+2}, {n}")
        a(f"s_mov_b32 s{r+3}, 0x20000")
    a("s_waitcnt lgkmcnt(0)")

    def srd(r, lo, off):
        a(f"s_add_u32 s{r}, s{lo}, s{off}")
        a(f"s_addc_u32 s{r+1}, s{lo+1}, 0")
        a(f"s_and_b32 s{r+1}, s{r+1}, 0xffff")

    srd(sK, 6, sTmp2)
    for p in range(3):
        a(f"buffer_load_dwordx4 v{vD}, {s4(sK)}, s{sGoff} offen offset:{p*1024}{cfg.ldpol} lds",
          fill=("K", 0, p, lambda t: 0), vtag="K0")
    srd(sQ, 4, sTmp)
    for j in range(12):
        a(f"s_add_u32 m0, s{sM0}, {(j+1)*SLOT}")
        if j:
            a(f"s_add_u32 s{sCnt}, s{sCnt}, 3072")
        else:
            a("s_nop 0")
        for p in range(3):
            a(f"buffer_load_dwordx4 v{vD}, {s4(sQ)}, s{sCnt} offen offset:{p*1024}{cfg.ldpol} lds",
              fill=("Q", j, p, lambda t, j=j: j + 1), vtag=("Q", j // 2))
    srd(sV, 8, sTmp2)
    srd(sO, 10, sTmp)
    a(f"s_mov_b32 s{sScale}, {f32(math.log2(math.e) / math.sqrt(192.0))}")
    a(f"s_mov_b32 s{sMask}, 0xffff0000")
    a(f"s_mov_b32 s{sHi}, {f32(cfg.hi)}")
    a(f"s_mov_b32 s{sLo}, {f32(cfg.lo)}")
    a(f"s_mov_b32 s{sFwd}, {2*SLOT}")
    a(f"s_mov_b32 s{sBack}, {(-10*SLOT) & 0xffffffff:#x}")
    a(f"s_add_u32 s{sM0w}, s{sM0}, {10*SLOT}")
    a(f"s_mul_i32 s{sPriv}, s{sW}, {PRIVSZ}")
    a(f"s_add_u32 s{sPriv}, s{sPriv}, {PRIV0}")
    a(f"s_mov_b32 s{sRd}, 0")
    if cfg.prefetch:
        wait_for("pf")
    lane_addrs(a, 0, SLOT)
    a(f"v_bfe_u32 v{vT1}, v{vT}, 3, 1")
    a(f"v_mul_u32_u24 v{vT1}, {SLOT}, v{vT1}")
    a(f"v_and_b32 v{vT2}, 7, v{vT}")
    a(f"v_mul_u32_u24 v{vT2}, 384, v{vT2}")
    a(f"v_add_u32 v{vT1}, v{vT1}, v{vT2}")
    a(f"v_lshrrev_b32 v{vT2}, 4, v{vT}")
    a(f"v_lshl_add_u32 v{vT1}, v{vT2}, 4, v{vT1}")
    a(f"s_add_u32 s{sTmp}, s{sM0}, {SLOT}")
    a(f"v_add_u32 v{vT}, s{sTmp}, v{vT1}")
    for r in range(4):
        a(f"v_mov_b32 v{vONE+r}, 0x3f803f80")
    zero_acc(a)
    seq = 1
    for qb in range(6):
        wait_for(("Q", qb))
        base = vP if qb % 2 == 0 else vB
        for ks in range(6):
            a(f"ds_read_b128 {v4(base + 4*ks)}, v{vT} offset:{ks*64}", need=("Q", 2 * qb), own=True)
        out.append(Ins("", ))
        if qb < 5:
            a(f"v_add_u32 v{vT}, {2*SLOT}, v{vT}")
        a("s_waitcnt lgkmcnt(0)", qdone=qb)
        for _ in range(2):
            if seq <= 2 * cfg.L - 1:
                t, isv = divmod(seq, 2)
                a(f"s_add_u32 m0, s{sM0}, {seq*SLOT}")
                a(f"s_add_u32 s{sTmp}, s{sGoff}, {t*12288}")
                for p in range(3):
                    a(f"buffer_load_dwordx4 v{vD}, {s4(sV if isv else sK)}, s{sTmp} offen offset:{p*1024}{cfg.ldpol} lds",
                      fill=("V" if isv else "K", t, p, lambda tt, seq=seq: seq), vtag=("S", seq), qfree=seq - 1)
                seq += 1
        for i in range(0, 24, 2):
            for j, t in ((i, vB + 24), (i + 1, vB + 26)):
                a(f"v_lshlrev_b32 v{t}, 16, v{base+j}")
                a(f"v_and_b32 v{t+1}, s{sMask}, v{base+j}")
                a(f"v_mul_f32 v{t}, s{sScale}, v{t}")
                a(f"v_mul_f32 v{t+1}, s{sScale}, v{t+1}")
            for j, t in ((i, vB + 24), (i + 1, vB + 26)):
                a(f"v_cvt_pk_bf16_f32 v{t}, v{t}, v{t+1}")
            for j, t in ((i, vB + 24), (i + 1, vB + 26)):
                a(f"v_accvgpr_write_b32 a{qb*24+j}, v{t}")
    a(f"s_add_u32 s{sGoff}, s{sGoff}, {cfg.L*12288}")
    a(f"s_add_u32 s{sM0}, s{sM0}, {2*(cfg.L % 6)*SLOT}")
    a(f"s_mov_b32 s{sCnt}, 0")
    if cfg.stamps:
        a(f"s_memrealtime {s2(sT1)}")
        a(f"s_memtime {s2(sC0)}")
        a("s_waitcnt lgkmcnt(0)")
    a("s_barrier")
    for ks in range(6):
        out.append(kread(B(ks), 0, ks, 0))
    a("s_waitcnt lgkmcnt(0)")
    return out


def epilogue(cfg):
    out = []

    def a(t, **k):
        out.append(Ins(t, **k))

    vW, vR, vG = vK, vV, vT
    a(f"v_mbcnt_lo_u32_b32 v{vT1}, -1, 0")
    a(f"v_mbcnt_hi_u32_b32 v{vT1}, -1, v{vT1}")
    a(f"v_and_b32 v{vT2}, 15, v{vT1}")
    a(f"v_mul_u32_u24 v{vW}, {STG}, v{vT2}")
    a(f"v_lshrrev_b32 v{vT2}, 4, v{vT1}")
    a(f"v_lshl_add_u32 v{vW}, v{vT2}, 3, v{vW}")
    a(f"v_add_u32 v{vW}, s{sPriv}, v{vW}")
    a(f"v_lshrrev_b32 v{vT2}, 3, v{vT1}")
    a(f"v_mul_u32_u24 v{vR}, {STG}, v{vT2}")
    a(f"v_mul_u32_u24 v{vG}, 384, v{vT2}")
    a(f"v_and_b32 v{vT2}, 7, v{vT1}")
    a(f"v_lshl_add_u32 v{vR}, v{vT2}, 4, v{vR}")
    a(f"v_lshl_add_u32 v{vG}, v{vT2}, 4, v{vG}")
    a(f"v_add_u32 v{vR}, s{sPriv}, v{vR}")
    a(f"s_mul_i32 s{sTmp}, s{sW}, 36864")

    def conv(qb, dbs):
        buf = (qb % 4) * 16 * STG
        for db in dbs:
            f, n = O(qb, db)
            if f == "a":
                t = vB + 24 + 4 * (db % 4)
                for r in range(4):
                    a(f"v_accvgpr_read_b32 v{t+r}, a{n+r}")
                n = t
            for r in range(4):
                a(f"v_mul_f32 v{n+r}, v{vL+qb}, v{n+r}")
            a(f"v_cvt_pk_bf16_f32 v{n}, v{n}, v{n+1}")
            a(f"v_cvt_pk_bf16_f32 v{n+1}, v{n+2}, v{n+3}")
            a(f"ds_write_b64 v{vW}, {v2(n)} offset:{buf + 32*db}")

    def rb(qb):
        return vP if qb % 2 == 0 else vB

    def reads(qb):
        buf = (qb % 4) * 16 * STG
        for i in range(6):
            h, t = divmod(i, 3)
            a(f"ds_read_b128 {v4(rb(qb) + 4*i)}, v{vR} offset:{buf + h*8*STG + 128*t}")

    def stores(qb):
        for i in range(6):
            h, t = divmod(i, 3)
            a(f"buffer_store_dwordx4 {v4(rb(qb) + 4*i)}, v{vG}, {s4(sO)}, s{sTmp} offen offset:{h*3072 + 128*t}{cfg.stpol}")
        if qb < 5:
            a(f"s_add_u32 s{sTmp}, s{sTmp}, 6144")

    conv(0, range(12))
    for qb in range(6):
        a("s_waitcnt lgkmcnt(0)")
        reads(qb)
        if qb < 5:
            conv(qb + 1, range(0, 3))
            a("s_waitcnt lgkmcnt(3)")
        else:
            a("s_waitcnt lgkmcnt(0)")
        stores(qb)
        if qb < 5:
            conv(qb + 1, range(3, 12))
    return out


def slow_path(cfg):
    parts = []
    out = []

    def a(t, **k):
        out.append(Ins(t, **k))

    def cut():
        parts.append(list(out))
        out.clear()

    m = [B(9), B(9) + 1, B(9) + 2, B(9) + 3, vT1, vT2]
    S = B(6)

    def load(srd, base):
        for rg in range(4):
            a(f"s_add_u32 m0, s{sPriv}, {base + rg*RG}")
            a(f"s_add_u32 s{sTmp}, s{sGoff}, {rg*3072}")
            for p in range(3):
                a(f"buffer_load_dwordx4 v{vD}, {s4(srd)}, s{sTmp} offen offset:{p*1024} lds")

    def kfrags(kb):
        for ks in range(6):
            a(f"ds_read_b128 {v4(B(ks))}, v{vK} offset:{kb*1536 + ks*64}")
        a("s_waitcnt lgkmcnt(0)")

    def chain(qb):
        for ks in range(6):
            a(f"{M16} {v4(S)}, {v4(B(ks))}, {Q(qb, ks)}, {'0' if ks == 0 else v4(S)}")
        a("s_nop 7")

    a("L_slow:")
    a("s_nop 7")
    a(f"s_add_u32 s{sTmp2}, s{sPriv}, {4*RG}")
    lane_addrs(a, f"s{sPriv}", f"s{sTmp2}")
    a(f"v_xor_b32 v{vP}, 16, v{vT}")
    a(f"v_lshlrev_b32 v{vP}, 2, v{vP}")
    a(f"v_xor_b32 v{vP+1}, 32, v{vT}")
    a(f"v_lshlrev_b32 v{vP+1}, 2, v{vP+1}")
    for qb in range(6):
        a(f"v_mov_b32 v{m[qb]}, 0xff800000")
    a(f"s_mov_b32 s{sGoff}, 0")
    cut()
    a("L_slow_max:")
    load(sK, 0)
    a("s_waitcnt vmcnt(0)")
    for kb in range(2):
        kfrags(kb)
        for qb in range(6):
            chain(qb)
            a(f"v_max3_f32 v{m[qb]}, v{m[qb]}, v{S}, v{S+1}")
            a(f"v_max3_f32 v{m[qb]}, v{m[qb]}, v{S+2}, v{S+3}")
    a(f"s_add_u32 s{sGoff}, s{sGoff}, 12288")
    a(f"s_cmp_lt_u32 s{sGoff}, 393216")
    a("s_cbranch_scc1 L_slow_max")
    cut()
    for x in range(2):
        for qb in range(6):
            a(f"ds_bpermute_b32 v{vP+4+qb}, v{vP+x}, v{m[qb]}")
        a("s_waitcnt lgkmcnt(0)")
        for qb in range(6):
            a(f"v_max_f32 v{m[qb]}, v{m[qb]}, v{vP+4+qb}")
    zero_acc(a)
    a(f"s_mov_b32 s{sGoff}, 0")
    cut()
    a("L_slow_main:")
    load(sK, 0)
    load(sV, 4 * RG)
    a("s_waitcnt vmcnt(0)")
    for kb in range(2):
        kfrags(kb)
        for qb in range(6):
            chain(qb)
            for r in range(4):
                a(f"v_sub_f32 v{S+r}, v{S+r}, v{m[qb]}")
            for r in range(4):
                a(f"v_exp_f32 v{S+r}, v{S+r}")
            a("s_nop 0")
            for h in range(2):
                a(f"v_cvt_pk_bf16_f32 v{P(qb)+2*kb+h}, v{S+2*h}, v{S+2*h+1}")
    a("s_nop 1")
    for qb in range(6):
        a(f"{M16} {v4(S)}, {v4(vONE)}, {v4(P(qb))}, 0")
        a("s_nop 7")
        a(f"v_add_f32 v{vL+qb}, v{vL+qb}, v{S}")
    for db in range(12):
        t = B(7 + db % 2)
        for jj in range(2):
            a(f"ds_read_b64_tr_b16 {v2(t + 2*jj)}, v{vV} offset:{jj*1536 + db*32}")
        a("s_waitcnt lgkmcnt(0)")
        for qb in range(6):
            a(f"{M16} {O4(qb, db)}, {v4(t)}, {v4(P(qb))}, {O4(qb, db)}")
    a(f"s_add_u32 s{sGoff}, s{sGoff}, 12288")
    a(f"s_cmp_lt_u32 s{sGoff}, 393216")
    a("s_cbranch_scc1 L_slow_main")
    cut()
    for qb in range(6):
        a(f"v_rcp_f32 v{vL+qb}, v{vL+qb}")
    a("s_nop 7")
    a("s_branch L_epi")
    cut()
    return parts


def build(cfg):
    L = cfg.L
    pro = prologue(cfg)
    body = tile(cfg, True, 3 * (2 * L - 3), loop_label="L_loop")
    tails = []
    for t in range(NT - L, NT):
        allowed = max(0, 63 - min(63, 2 * t + 2))
        tails.append(tile(cfg, False, 3 * allowed, last=(t == NT - 1)))
    mid = []
    if cfg.stamps:
        mid += [Ins(f"s_memrealtime {s2(sT2)}"), Ins(f"s_memtime {s2(sC1)}"), Ins("s_waitcnt lgkmcnt(0)")]
    if cfg.force_slow:
        mid += [Ins("s_branch L_slow")]
    else:
        mid += [Ins(f"s_cmp_lg_u64 {s2(sFlag)}, 0"), Ins("s_cbranch_scc1 L_slow")]
    epi = [Ins("L_epi:")] + epilogue(cfg)
    fin = []
    if cfg.stamps:
        fin = [Ins(x) for x in (
            "s_waitcnt vmcnt(0)", f"s_memrealtime {s2(sT3)}", "s_waitcnt lgkmcnt(0)",
            f"s_and_b32 s{sWs+1}, s{sWs+1}, 0xffff", f"s_mov_b32 s{sWs+2}, 402653184", f"s_mov_b32 s{sWs+3}, 0x20000",
            f"s_lshl_b32 s{sTmp}, s2, 2", f"s_add_u32 s{sTmp}, s{sTmp}, s{sW}", f"s_lshl_b32 s{sTmp}, s{sTmp}, 5",
            f"s_sub_u32 s{sC1}, s{sC1}, s{sC0}",
            f"v_mov_b32 v16, s{sT0}", f"v_mov_b32 v17, s{sT1}", f"v_mov_b32 v18, s{sT2}", f"v_mov_b32 v19, s{sT3}",
            f"v_mov_b32 v20, s{sC1}", "v_mov_b32 v21, 0", "s_mov_b64 exec, 1",
            f"buffer_store_dwordx4 v[16:19], v21, {s4(sWs)}, s{sTmp} offen",
            f"buffer_store_dword v20, v21, {s4(sWs)}, s{sTmp} offen offset:16")]
    end = [Ins("L_end:"), Ins("s_endpgm")]
    slow = slow_path(cfg)

    def q_alias(seq):
        res = []
        for x in seq:
            res.append(x)
            if x.kind == "ds" and x.tags.get("need", ("",))[0] == "Q" and "offset:320" in x.text:
                qb2 = x.tags["need"][1]
                res.append(Ins("ds_read_b32 v255, v0", need=("Q", qb2 + 1), own=True, ghost=True))
        return res

    trace = [(x, 0) for x in q_alias(pro)]
    for t in range(NT - L):
        trace += [(x, t) for x in body]
    for i, tl in enumerate(tails):
        trace += [(x, NT - L + i) for x in tl]
    fast = trace + [(x, 0) for x in mid + epi + fin]
    errs = verify(fast, "fast")
    st = trace + [(x, 0) for x in mid + slow[0] + slow[1] * 2 + slow[2] + slow[3] * 2 + slow[4] + epi + fin]
    errs += [e for e in verify(st, "slow")]
    cyc, over = gap_report(body)
    text = []
    align = [Ins(".p2align 6"), Ins("L_loop:")]
    for x in pro + align + body + [y for tl in tails for y in tl] + mid + epi + fin + end + [y for p in slow for y in p]:
        if x.text:
            text.append(x.text if x.is_label else "    " + x.text)
    asm = HEADER.format(grid=256, block=256, lds=163840) + "\n".join(text) + "\n" + \
        FOOTER.format(nvgpr=512, nsgpr=102, accum=256, extra="")
    return asm, errs, cyc, over


if __name__ == "__main__":
    cfg = Cfg()
    outp = sys.argv[1]
    for kv in sys.argv[2:]:
        k, v = kv.split("=", 1)
        old = getattr(cfg, k)
        setattr(cfg, k, (" " + v if v else "") if isinstance(old, str) else type(old)(eval(v)))
    asm, errs, cyc, over = build(cfg)
    for e in errs[:40]:
        print("HAZARD", e)
    print(f"{outp}: {len(errs)} hazards; loop model cycles {cyc}; over-full gaps {over}")
    open(outp, "w").write(asm)
```

```python
import math
import struct
import sys

from asmlib import Ins, verify, gap_report
from common import HEADER, FOOTER

M16 = "v_mfma_f32_16x16x32_bf16"
NT = 32
SLOT = 12576
RG = 3104
PRIV0, PRIVSZ = 50432, 28160
STG = 400

vT, vK, vV, vD = 0, 1, 2, 3
vL = 4
vT1, vT2 = 10, 11
vONE, vP, vB, vO = 12, 16, 40, 80
sW = 3
sQ, sK, sV, sO, sC = 12, 16, 20, 24, 28
sScale, sMask, sGoff, sM0, sCnt, sDel, sRd, sTmp, sTmp2 = 32, 33, 34, 35, 36, 37, 38, 39, 40
sHi, sLo, sFwd, sBack, sM0w, sPriv = 41, 42, 43, 44, 45, 46
sFlag, sFlag2 = 48, 50
sT0, sT1, sT2, sT3, sC0, sC1, sWs = 56, 58, 60, 62, 64, 66, 68


def f32(x):
    return "0x%08x" % struct.unpack("<I", struct.pack("<f", x))[0]


def v4(n): return f"v[{n}:{n+3}]"
def v2(n): return f"v[{n}:{n+1}]"
def s4(n): return f"s[{n}:{n+3}]"
def s2(n): return f"s[{n}:{n+1}]"
def P(qb): return vP + 4 * qb
def B(i): return vB + 4 * i
def Q(qb, ks): return f"a[{qb*24+ks*4}:{qb*24+ks*4+3}]"


def O(qb, db):
    if qb >= 3:
        return ("v", vO + 4 * ((qb - 3) * 12 + db))
    i = qb * 12 + db
    if i < 8:
        return ("v", vO + 144 + 4 * i)
    return ("a", 144 + 4 * (i - 8))


def O4(qb, db):
    f, n = O(qb, db)
    return f"{f}[{n}:{n+3}]"


class Cfg:
    L = 4
    ldpol = " nt"
    stpol = " nt"
    stamps = False
    bar_gap = 55
    prefetch = True
    hi = 2.0 ** 40
    lo = 2.0 ** -20
    force_slow = False
    dbgstamp = False


def kread(dst, kb, ks, rel, **kw):
    return Ins(f"ds_read_b128 {v4(dst)}, v{vK} offset:{kb*1536 + ks*64}", need=("K", rel), **kw)


def vread(dst, db, jj, **kw):
    return Ins(f"ds_read_b64_tr_b16 {v2(dst + 2*jj)}, v{vV} offset:{jj*1536 + db*32}", need=("V", 0), **kw)


class Gap:
    def __init__(self):
        self.sc, self.mem, self.valu, self.post = [], [], [], []

    def free(self):
        return 2 - sum(x.vslots for x in self.mem + self.valu) - len(self.post)

    def seq(self):
        return self.sc + self.mem + self.valu + self.post


def tile(cfg, dma, vm, last=False, loop_label=None):
    M = []
    k1 = [B(6), B(7), B(8), B(9), B(0), B(1)]
    rot = [B(2), B(3), B(4)]
    sblk = {}
    for kb in range(2):
        for qb in range(6):
            d = P(qb) if kb == 0 else rot[qb % 3]
            sblk[kb * 6 + qb] = d
            for ks in range(6):
                a = B(ks) if kb == 0 else k1[ks]
                M.append(Ins(f"{M16} {v4(d)}, {v4(a)}, {Q(qb, ks)}, {'0' if ks == 0 else v4(d)}"))
    ones_t = [B(2), B(9), B(0), B(1), B(0), B(1)]
    vblk = [B(5), B(6), B(7), B(8), B(3), B(4), B(5), B(2), B(6), B(7), B(8), B(9)]
    ones_at = {}

    def ones(qb):
        ones_at[qb] = len(M)
        M.append(Ins(f"{M16} {v4(ones_t[qb])}, {v4(vONE)}, {v4(P(qb))}, 0"))

    def pair(p):
        for qb in range(6):
            for db in (2 * p, 2 * p + 1):
                M.append(Ins(f"{M16} {O4(qb, db)}, {v4(vblk[db])}, {v4(P(qb))}, {O4(qb, db)}"))

    for qb in range(4):
        ones(qb)
    pair(0)
    ones(4)
    ones(5)
    for p in range(1, 6):
        pair(p)
    n = len(M)
    G = [Gap() for _ in range(n)]

    for c in range(12):
        kb, qb = divmod(c, 6)
        s = sblk[c]
        for r in range(4):
            G[6 * c + 8 + r].valu.append(Ins(f"v_exp_f32 v{s+r}, v{s+r}"))
        for h in range(2):
            G[6 * c + 12].valu.append(Ins(f"v_cvt_pk_bf16_f32 v{P(qb)+2*kb+h}, v{s+2*h}, v{s+2*h+1}"))
    for ks, g in zip(range(6), (0, 1, 2, 3, 31, 31)):
        G[g].mem.append(kread(k1[ks], 1, ks, 0))
    for db, g in enumerate((61, 67, 73, 79, 82, 84, 91, 93, 103, 105, 115, 117)):
        for jj in range(2):
            G[g].mem.append(vread(vblk[db], db, jj))
    for qb, g in enumerate((80, 80, 81, 81, 96, 96)):
        G[g].valu.append(Ins(f"v_add_f32 v{vL+qb}, v{vL+qb}, v{ones_t[qb]}"))
    if not last:
        for ks, g in zip(range(6), (126, 127, 128, 129, 130, 131)):
            G[g].mem.append(kread(B(ks), 0, ks, 1))

    bg = cfg.bar_gap
    G[bg].sc.append(Ins(f"s_waitcnt vmcnt({vm})"))
    G[bg].post.append(Ins("s_barrier"))

    chains = []
    if not last:
        chains.append((38, [Ins(f"s_cmp_eq_u32 s{sRd}, {10*SLOT}"),
                            Ins(f"s_cselect_b32 s{sDel}, s{sBack}, s{sFwd}"),
                            Ins(f"s_add_u32 s{sRd}, s{sRd}, s{sDel}")]))
        G[49].valu.append(Ins(f"v_add_u32 v{vK}, s{sDel}, v{vK}"))
        G[120].valu.append(Ins(f"v_add_u32 v{vV}, s{sDel}, v{vV}"))
    if dma:
        L = cfg.L
        for which, srd, g0 in (("K", sK, 86), ("V", sV, 107)):
            off = 0 if which == "K" else 1
            for p in range(3):
                g = g0 + (0, 8, 13)[p] if which == "K" else g0 + 3 * p
                G[g].mem.append(Ins(f"buffer_load_dwordx4 v{vD}, {s4(srd)}, s{sGoff} offen offset:{p*1024}{cfg.ldpol} lds",
                                    fill=(which, L, p, (lambda t, off=off: 2 * ((t + L) % 6) + off))))
        G[85].sc.append(Ins(f"s_mov_b32 m0, s{sM0}"))
        G[104].sc.append(Ins(f"s_add_u32 m0, s{sM0}, {SLOT}"))
        chains.append((118, [Ins(f"s_add_u32 s{sGoff}, s{sGoff}, 12288"),
                             Ins(f"s_cmp_eq_u32 s{sM0}, s{sM0w}"),
                             Ins(f"s_cselect_b32 s{sTmp}, s{sBack}, s{sFwd}"),
                             Ins(f"s_add_u32 s{sM0}, s{sM0}, s{sTmp}")]))
    if last:
        g = 100
        chk = [f"v_max3_f32 v{vT1}, v{vL}, v{vL+1}, v{vL+2}", f"v_min3_f32 v{vT2}, v{vL}, v{vL+1}, v{vL+2}",
               f"v_max3_f32 v{vT1}, v{vT1}, v{vL+3}, v{vL+4}", f"v_min3_f32 v{vT2}, v{vT2}, v{vL+3}, v{vL+4}",
               f"v_max_f32 v{vT1}, v{vT1}, v{vL+5}", f"v_min_f32 v{vT2}, v{vT2}, v{vL+5}",
               f"v_cmp_lt_f32 {s2(sFlag)}, s{sHi}, v{vT1}", f"v_cmp_gt_f32 {s2(sFlag2)}, s{sLo}, v{vT2}"]
        chk += [f"v_rcp_f32 v{vL+qb}, v{vL+qb}" for qb in range(6)]
        for x in chk:
            x = Ins(x)
            while G[g].free() < x.vslots or G[g].mem:
                g += 1
            G[g].valu.append(x)
        chains.append((g + 2, [Ins(f"s_or_b64 {s2(sFlag)}, {s2(sFlag)}, {s2(sFlag2)}")]))
    if loop_label:
        chains.append((140, [Ins(f"s_add_u32 s{sCnt}, s{sCnt}, 1"), Ins(f"s_cmp_lt_u32 s{sCnt}, {NT - cfg.L}")]))

    q = [(set(Ins(f"v_mov_b32 {v4(B(ks))}, 0").w), -20) for ks in range(6)]
    entry_wait = None
    for i in range(n + (0 if last else 1)):
        need = set(M[i % n].r)
        idx = max((j for j, (w, g) in enumerate(q) if w & need), default=None)
        if idx is not None:
            assert q[idx][1] < i - 1, f"read for MFMA {i} issued too late"
            vis = [j for j, (w, g) in enumerate(q) if g < i - 1]
            idx = max([idx] + [j for j in vis if q[j][1] <= i - 9])
            cnt = len(vis) - 1 - idx
            if i == 0:
                entry_wait = cnt
            else:
                assert not G[i - 1].sc, f"scalar slot of gap {i-1} taken"
                G[i - 1].sc.append(Ins(f"s_waitcnt lgkmcnt({cnt})"))
            q = q[idx + 1:]
        if i < n:
            q += [(set(x.w), i) for x in G[i].mem if x.kind == "ds"]
    assert entry_wait == 0

    for g, chain in chains:
        for x in chain:
            while G[g].sc:
                g += 1
            G[g].sc.append(x)
            g += 1
    if loop_label:
        G[n - 1].post.append(Ins(f"s_cbranch_scc1 {loop_label}"))

    def pad(prod, cons_gap, cons):
        def states():
            t = 0
            for g in range(prod, cons_gap + 1):
                if g > prod:
                    t += 1
                for x in G[g].seq():
                    if x is cons:
                        return t
                    t += x.states
            raise AssertionError
        for g in range(prod, cons_gap + 1):
            if states() < 8 and not G[g].sc:
                G[g].sc.append(Ins("s_nop 0"))
        for g in range(prod, cons_gap):
            while states() < 8 and G[g].sc[0].kind == "nop" and G[g].free() > G[g].sc[0].states - 1:
                G[g].sc[0] = Ins(f"s_nop {G[g].sc[0].states}")
        assert states() >= 8, (prod, cons_gap)

    for c in range(12):
        pad(6 * c + 5, 6 * c + 8, G[6 * c + 8].valu[0])
    for qb, g in enumerate((80, 80, 81, 81, 96, 96)):
        pad(ones_at[qb], g, [x for x in G[g].valu if x.w == [f"v{vL+qb}"]][0])

    out = []
    for m, g in zip(M, G):
        out.append(m)
        out += g.seq()
    return out


def lane_addrs(a, kbase, vbase):
    a(f"v_mbcnt_lo_u32_b32 v{vT}, -1, 0")
    a(f"v_mbcnt_hi_u32_b32 v{vT}, -1, v{vT}")
    a(f"v_and_b32 v{vT1}, 3, v{vT}")
    a(f"v_mul_u32_u24 v{vK}, {RG}, v{vT1}")
    a(f"v_lshlrev_b32 v{vV}, 3, v{vT1}")
    a(f"v_bfe_u32 v{vT1}, v{vT}, 2, 2")
    a(f"v_mul_u32_u24 v{vT2}, 384, v{vT1}")
    a(f"v_add_u32 v{vK}, v{vK}, v{vT2}")
    a(f"v_mul_u32_u24 v{vT2}, {RG}, v{vT1}")
    a(f"v_add_u32 v{vV}, v{vV}, v{vT2}")
    a(f"v_lshrrev_b32 v{vT1}, 4, v{vT}")
    a(f"v_lshl_add_u32 v{vK}, v{vT1}, 4, v{vK}")
    a(f"v_mul_u32_u24 v{vT2}, 384, v{vT1}")
    a(f"v_add_u32 v{vV}, v{vV}, v{vT2}")
    a(f"v_add_u32 v{vK}, {kbase}, v{vK}")
    a(f"v_add_u32 v{vV}, {vbase}, v{vV}")


def zero_acc(a):
    for qb in range(6):
        a(f"v_mov_b32 v{vL+qb}, 0")
    for qb in range(6):
        for db in range(12):
            f, n = O(qb, db)
            for r in range(4):
                a(f"v_mov_b32 v{n+r}, 0" if f == "v" else f"v_accvgpr_write_b32 a{n+r}, 0")


def prologue(cfg):
    out = []
    vmq = []

    def a(t, **k):
        x = Ins(t, **k)
        out.append(x)
        if x.kind == "vmem":
            vmq.append(k.get("vtag"))

    def wait_for(tag):
        last = max(i for i, t in enumerate(vmq) if t == tag)
        a(f"s_waitcnt vmcnt({len(vmq) - 1 - last})")
        del vmq[:last + 1]

    a("s_cmp_ge_u32 s2, 256")
    a("s_cbranch_scc1 L_end")
    a("s_load_dwordx4 s[4:7], s[0:1], 0")
    a("s_load_dwordx4 s[8:11], s[0:1], 16")
    if cfg.stamps:
        a(f"s_load_dwordx2 {s2(sWs)}, s[0:1], {32 if cfg.dbgstamp else 40}")
        a(f"s_memrealtime {s2(sT0)}")
    if cfg.prefetch:
        a(f"s_getpc_b64 {s2(sC)}")
        a("L_pc:")
        a(f"s_and_b32 s{sC+1}, s{sC+1}, 0xffff")
        a(f"s_mov_b32 s{sC+2}, L_slow-L_pc")
        a(f"s_mov_b32 s{sC+3}, 0x20000")
        a(f"v_lshlrev_b32 v{vT1}, 7, v0")
        a(f"buffer_load_dword v{vT2}, v{vT1}, {s4(sC)}, 0 offen", vtag="pf")
    a(f"v_lshrrev_b32 v{vK}, 6, v0")
    a(f"v_and_b32 v{vD}, 63, v0")
    a(f"v_readfirstlane_b32 s{sW}, v{vK}")
    a(f"v_lshlrev_b32 v{vD}, 4, v{vD}")
    a(f"s_mul_i32 s{sTmp}, s2, 147456")
    a(f"s_mul_i32 s{sTmp2}, s2, 393216")
    a(f"s_mul_i32 s{sGoff}, s{sW}, 3072")
    a(f"s_mul_i32 s{sM0}, s{sW}, {RG}")
    a(f"s_mul_i32 s{sCnt}, s{sW}, 36864")
    a(f"s_mov_b32 m0, s{sM0}")
    for r, n in ((sK, 393216), (sQ, 147456), (sV, 393216), (sO, 147456)):
        a(f"s_mov_b32 s{r+2}, {n}")
        a(f"s_mov_b32 s{r+3}, 0x20000")
    a("s_waitcnt lgkmcnt(0)")

    def srd(r, lo, off):
        a(f"s_add_u32 s{r}, s{lo}, s{off}")
        a(f"s_addc_u32 s{r+1}, s{lo+1}, 0")
        a(f"s_and_b32 s{r+1}, s{r+1}, 0xffff")

    srd(sK, 6, sTmp2)
    for p in range(3):
        a(f"buffer_load_dwordx4 v{vD}, {s4(sK)}, s{sGoff} offen offset:{p*1024}{cfg.ldpol} lds",
          fill=("K", 0, p, lambda t: 0), vtag="K0")
    srd(sQ, 4, sTmp)
    for j in range(12):
        a(f"s_add_u32 m0, s{sM0}, {(j+1)*SLOT}")
        if j:
            a(f"s_add_u32 s{sCnt}, s{sCnt}, 3072")
        else:
            a("s_nop 0")
        for p in range(3):
            a(f"buffer_load_dwordx4 v{vD}, {s4(sQ)}, s{sCnt} offen offset:{p*1024}{cfg.ldpol} lds",
              fill=("Q", j, p, lambda t, j=j: j + 1), vtag=("Q", j // 2))
    srd(sV, 8, sTmp2)
    srd(sO, 10, sTmp)
    a(f"s_mov_b32 s{sScale}, {f32(math.log2(math.e) / math.sqrt(192.0))}")
    a(f"s_mov_b32 s{sMask}, 0xffff0000")
    a(f"s_mov_b32 s{sHi}, {f32(cfg.hi)}")
    a(f"s_mov_b32 s{sLo}, {f32(cfg.lo)}")
    a(f"s_mov_b32 s{sFwd}, {2*SLOT}")
    a(f"s_mov_b32 s{sBack}, {(-10*SLOT) & 0xffffffff:#x}")
    a(f"s_add_u32 s{sM0w}, s{sM0}, {10*SLOT}")
    a(f"s_mul_i32 s{sPriv}, s{sW}, {PRIVSZ}")
    a(f"s_add_u32 s{sPriv}, s{sPriv}, {PRIV0}")
    a(f"s_mov_b32 s{sRd}, 0")
    if cfg.prefetch:
        wait_for("pf")
    lane_addrs(a, 0, SLOT)
    a(f"v_bfe_u32 v{vT1}, v{vT}, 3, 1")
    a(f"v_mul_u32_u24 v{vT1}, {SLOT}, v{vT1}")
    a(f"v_and_b32 v{vT2}, 7, v{vT}")
    a(f"v_mul_u32_u24 v{vT2}, 384, v{vT2}")
    a(f"v_add_u32 v{vT1}, v{vT1}, v{vT2}")
    a(f"v_lshrrev_b32 v{vT2}, 4, v{vT}")
    a(f"v_lshl_add_u32 v{vT1}, v{vT2}, 4, v{vT1}")
    a(f"s_add_u32 s{sTmp}, s{sM0}, {SLOT}")
    a(f"v_add_u32 v{vT}, s{sTmp}, v{vT1}")
    for r in range(4):
        a(f"v_mov_b32 v{vONE+r}, 0x3f803f80")
    zero_acc(a)
    seq = 1
    for qb in range(6):
        wait_for(("Q", qb))
        base = vP if qb % 2 == 0 else vB
        for ks in range(6):
            a(f"ds_read_b128 {v4(base + 4*ks)}, v{vT} offset:{ks*64}", need=("Q", 2 * qb), own=True)
        out.append(Ins("", ))
        if qb < 5:
            a(f"v_add_u32 v{vT}, {2*SLOT}, v{vT}")
        a("s_waitcnt lgkmcnt(0)", qdone=qb)
        for _ in range(2):
            if seq <= 2 * cfg.L - 1:
                t, isv = divmod(seq, 2)
                a(f"s_add_u32 m0, s{sM0}, {seq*SLOT}")
                a(f"s_add_u32 s{sTmp}, s{sGoff}, {t*12288}")
                for p in range(3):
                    a(f"buffer_load_dwordx4 v{vD}, {s4(sV if isv else sK)}, s{sTmp} offen offset:{p*1024}{cfg.ldpol} lds",
                      fill=("V" if isv else "K", t, p, lambda tt, seq=seq: seq), vtag=("S", seq), qfree=seq - 1)
                seq += 1
        for i in range(0, 24, 2):
            for j, t in ((i, vB + 24), (i + 1, vB + 26)):
                a(f"v_lshlrev_b32 v{t}, 16, v{base+j}")
                a(f"v_and_b32 v{t+1}, s{sMask}, v{base+j}")
                a(f"v_mul_f32 v{t}, s{sScale}, v{t}")
                a(f"v_mul_f32 v{t+1}, s{sScale}, v{t+1}")
            for j, t in ((i, vB + 24), (i + 1, vB + 26)):
                a(f"v_cvt_pk_bf16_f32 v{t}, v{t}, v{t+1}")
            for j, t in ((i, vB + 24), (i + 1, vB + 26)):
                a(f"v_accvgpr_write_b32 a{qb*24+j}, v{t}")
    a(f"s_add_u32 s{sGoff}, s{sGoff}, {cfg.L*12288}")
    a(f"s_add_u32 s{sM0}, s{sM0}, {2*(cfg.L % 6)*SLOT}")
    a(f"s_mov_b32 s{sCnt}, 0")
    if cfg.stamps:
        a(f"s_memrealtime {s2(sT1)}")
        a(f"s_memtime {s2(sC0)}")
        a("s_waitcnt lgkmcnt(0)")
    a("s_barrier")
    for ks in range(6):
        out.append(kread(B(ks), 0, ks, 0))
    a("s_waitcnt lgkmcnt(0)")
    return out


def epilogue(cfg):
    out = []

    def a(t, **k):
        out.append(Ins(t, **k))

    vW, vR, vG = vK, vV, vT
    a(f"v_mbcnt_lo_u32_b32 v{vT1}, -1, 0")
    a(f"v_mbcnt_hi_u32_b32 v{vT1}, -1, v{vT1}")
    a(f"v_and_b32 v{vT2}, 15, v{vT1}")
    a(f"v_mul_u32_u24 v{vW}, {STG}, v{vT2}")
    a(f"v_lshrrev_b32 v{vT2}, 4, v{vT1}")
    a(f"v_lshl_add_u32 v{vW}, v{vT2}, 3, v{vW}")
    a(f"v_add_u32 v{vW}, s{sPriv}, v{vW}")
    a(f"v_lshrrev_b32 v{vT2}, 3, v{vT1}")
    a(f"v_mul_u32_u24 v{vR}, {STG}, v{vT2}")
    a(f"v_mul_u32_u24 v{vG}, 384, v{vT2}")
    a(f"v_and_b32 v{vT2}, 7, v{vT1}")
    a(f"v_lshl_add_u32 v{vR}, v{vT2}, 4, v{vR}")
    a(f"v_lshl_add_u32 v{vG}, v{vT2}, 4, v{vG}")
    a(f"v_add_u32 v{vR}, s{sPriv}, v{vR}")
    a(f"s_mul_i32 s{sTmp}, s{sW}, 36864")

    def conv(qb, dbs):
        buf = (qb % 4) * 16 * STG
        for db in dbs:
            f, n = O(qb, db)
            if f == "a":
                t = vB + 24 + 4 * (db % 4)
                for r in range(4):
                    a(f"v_accvgpr_read_b32 v{t+r}, a{n+r}")
                n = t
            for r in range(4):
                a(f"v_mul_f32 v{n+r}, v{vL+qb}, v{n+r}")
            a(f"v_cvt_pk_bf16_f32 v{n}, v{n}, v{n+1}")
            a(f"v_cvt_pk_bf16_f32 v{n+1}, v{n+2}, v{n+3}")
            a(f"ds_write_b64 v{vW}, {v2(n)} offset:{buf + 32*db}")

    def rb(qb):
        return vP if qb % 2 == 0 else vB

    def reads(qb):
        buf = (qb % 4) * 16 * STG
        for i in range(6):
            h, t = divmod(i, 3)
            a(f"ds_read_b128 {v4(rb(qb) + 4*i)}, v{vR} offset:{buf + h*8*STG + 128*t}")

    def stores(qb):
        for i in range(6):
            h, t = divmod(i, 3)
            a(f"buffer_store_dwordx4 {v4(rb(qb) + 4*i)}, v{vG}, {s4(sO)}, s{sTmp} offen offset:{h*3072 + 128*t}{cfg.stpol}")
        if qb < 5:
            a(f"s_add_u32 s{sTmp}, s{sTmp}, 6144")

    conv(0, range(12))
    for qb in range(6):
        a("s_waitcnt lgkmcnt(0)")
        reads(qb)
        if qb < 5:
            conv(qb + 1, range(0, 3))
            a("s_waitcnt lgkmcnt(3)")
        else:
            a("s_waitcnt lgkmcnt(0)")
        stores(qb)
        if qb < 5:
            conv(qb + 1, range(3, 12))
    return out


def slow_path(cfg):
    parts = []
    out = []

    def a(t, **k):
        out.append(Ins(t, **k))

    def cut():
        parts.append(list(out))
        out.clear()

    m = [B(9), B(9) + 1, B(9) + 2, B(9) + 3, vT1, vT2]
    S = B(6)

    def load(srd, base):
        for rg in range(4):
            a(f"s_add_u32 m0, s{sPriv}, {base + rg*RG}")
            a(f"s_add_u32 s{sTmp}, s{sGoff}, {rg*3072}")
            for p in range(3):
                a(f"buffer_load_dwordx4 v{vD}, {s4(srd)}, s{sTmp} offen offset:{p*1024} lds")

    def kfrags(kb):
        for ks in range(6):
            a(f"ds_read_b128 {v4(B(ks))}, v{vK} offset:{kb*1536 + ks*64}")
        a("s_waitcnt lgkmcnt(0)")

    def chain(qb):
        for ks in range(6):
            a(f"{M16} {v4(S)}, {v4(B(ks))}, {Q(qb, ks)}, {'0' if ks == 0 else v4(S)}")
        a("s_nop 7")

    a("L_slow:")
    a("s_nop 7")
    a(f"s_add_u32 s{sTmp2}, s{sPriv}, {4*RG}")
    lane_addrs(a, f"s{sPriv}", f"s{sTmp2}")
    a(f"v_xor_b32 v{vP}, 16, v{vT}")
    a(f"v_lshlrev_b32 v{vP}, 2, v{vP}")
    a(f"v_xor_b32 v{vP+1}, 32, v{vT}")
    a(f"v_lshlrev_b32 v{vP+1}, 2, v{vP+1}")
    for qb in range(6):
        a(f"v_mov_b32 v{m[qb]}, 0xff800000")
    a(f"s_mov_b32 s{sGoff}, 0")
    cut()
    a("L_slow_max:")
    load(sK, 0)
    a("s_waitcnt vmcnt(0)")
    for kb in range(2):
        kfrags(kb)
        for qb in range(6):
            chain(qb)
            a(f"v_max3_f32 v{m[qb]}, v{m[qb]}, v{S}, v{S+1}")
            a(f"v_max3_f32 v{m[qb]}, v{m[qb]}, v{S+2}, v{S+3}")
    a(f"s_add_u32 s{sGoff}, s{sGoff}, 12288")
    a(f"s_cmp_lt_u32 s{sGoff}, 393216")
    a("s_cbranch_scc1 L_slow_max")
    cut()
    for x in range(2):
        for qb in range(6):
            a(f"ds_bpermute_b32 v{vP+4+qb}, v{vP+x}, v{m[qb]}")
        a("s_waitcnt lgkmcnt(0)")
        for qb in range(6):
            a(f"v_max_f32 v{m[qb]}, v{m[qb]}, v{vP+4+qb}")
    zero_acc(a)
    a(f"s_mov_b32 s{sGoff}, 0")
    cut()
    a("L_slow_main:")
    load(sK, 0)
    load(sV, 4 * RG)
    a("s_waitcnt vmcnt(0)")
    for kb in range(2):
        kfrags(kb)
        for qb in range(6):
            chain(qb)
            for r in range(4):
                a(f"v_sub_f32 v{S+r}, v{S+r}, v{m[qb]}")
            for r in range(4):
                a(f"v_exp_f32 v{S+r}, v{S+r}")
            a("s_nop 0")
            for h in range(2):
                a(f"v_cvt_pk_bf16_f32 v{P(qb)+2*kb+h}, v{S+2*h}, v{S+2*h+1}")
    a("s_nop 1")
    for qb in range(6):
        a(f"{M16} {v4(S)}, {v4(vONE)}, {v4(P(qb))}, 0")
        a("s_nop 7")
        a(f"v_add_f32 v{vL+qb}, v{vL+qb}, v{S}")
    for db in range(12):
        t = B(7 + db % 2)
        for jj in range(2):
            a(f"ds_read_b64_tr_b16 {v2(t + 2*jj)}, v{vV} offset:{jj*1536 + db*32}")
        a("s_waitcnt lgkmcnt(0)")
        for qb in range(6):
            a(f"{M16} {O4(qb, db)}, {v4(t)}, {v4(P(qb))}, {O4(qb, db)}")
    a(f"s_add_u32 s{sGoff}, s{sGoff}, 12288")
    a(f"s_cmp_lt_u32 s{sGoff}, 393216")
    a("s_cbranch_scc1 L_slow_main")
    cut()
    for qb in range(6):
        a(f"v_rcp_f32 v{vL+qb}, v{vL+qb}")
    a("s_nop 7")
    a("s_branch L_epi")
    cut()
    return parts


def build(cfg):
    L = cfg.L
    pro = prologue(cfg)
    body = tile(cfg, True, 3 * (2 * L - 3), loop_label="L_loop")
    tails = []
    for t in range(NT - L, NT):
        allowed = max(0, 63 - min(63, 2 * t + 2))
        tails.append(tile(cfg, False, 3 * allowed, last=(t == NT - 1)))
    mid = []
    if cfg.stamps:
        mid += [Ins(f"s_memrealtime {s2(sT2)}"), Ins(f"s_memtime {s2(sC1)}"), Ins("s_waitcnt lgkmcnt(0)")]
    if cfg.force_slow:
        mid += [Ins("s_branch L_slow")]
    else:
        mid += [Ins(f"s_cmp_lg_u64 {s2(sFlag)}, 0"), Ins("s_cbranch_scc1 L_slow")]
    epi = [Ins("L_epi:")] + epilogue(cfg)
    fin = []
    if cfg.stamps:
        fin = [Ins(x) for x in (
            "s_waitcnt vmcnt(0)", f"s_memrealtime {s2(sT3)}", "s_waitcnt lgkmcnt(0)",
            f"s_and_b32 s{sWs+1}, s{sWs+1}, 0xffff", f"s_mov_b32 s{sWs+2}, 402653184", f"s_mov_b32 s{sWs+3}, 0x20000",
            f"s_lshl_b32 s{sTmp}, s2, 2", f"s_add_u32 s{sTmp}, s{sTmp}, s{sW}", f"s_lshl_b32 s{sTmp}, s{sTmp}, 5",
            f"s_sub_u32 s{sC1}, s{sC1}, s{sC0}",
            f"v_mov_b32 v16, s{sT0}", f"v_mov_b32 v17, s{sT1}", f"v_mov_b32 v18, s{sT2}", f"v_mov_b32 v19, s{sT3}",
            f"v_mov_b32 v20, s{sC1}", "v_mov_b32 v21, 0", "s_mov_b64 exec, 1",
            f"buffer_store_dwordx4 v[16:19], v21, {s4(sWs)}, s{sTmp} offen",
            f"buffer_store_dword v20, v21, {s4(sWs)}, s{sTmp} offen offset:16")]
    if cfg.dbgstamp:
        fin = [Ins(x) for x in (
            "s_waitcnt vmcnt(0)", f"s_memrealtime {s2(sT3)}", "s_waitcnt lgkmcnt(0)",
            f"s_and_b32 s{sWs+1}, s{sWs+1}, 0xffff", f"s_mov_b32 s{sWs+2}, 256", f"s_mov_b32 s{sWs+3}, 0x20000",
            f"s_sub_u32 s{sC1}, s{sC1}, s{sC0}", f"s_not_b32 s{sTmp}, s{sT0}", f"s_not_b32 s{sTmp2}, s{sT1}",
            f"s_sub_u32 s{sC0}, s{sT2}, s{sT1}",
            f"v_mov_b32 v16, s{sTmp}", f"v_mov_b32 v17, s{sT1}", f"v_mov_b32 v18, s{sT2}", f"v_mov_b32 v19, s{sT3}",
            f"v_mov_b32 v20, s{sC1}", f"v_mov_b32 v22, s{sTmp2}", f"v_mov_b32 v23, s{sC0}", f"v_mov_b32 v24, s{sT0}", "v_mov_b32 v21, 0", "s_mov_b64 exec, 1")]
        fin += [Ins(f"buffer_atomic_umax v{r}, v21, {s4(sWs)}, 0 offen offset:{4*i}") for i, r in enumerate((16, 24, 22, 17, 18, 19))]
        fin += [Ins(f"buffer_atomic_add v{r}, v21, {s4(sWs)}, 0 offen offset:{24+4*i}") for i, r in enumerate((20, 23))]
    end = [Ins("L_end:"), Ins("s_endpgm")]
    slow = slow_path(cfg)

    def q_alias(seq):
        res = []
        for x in seq:
            res.append(x)
            if x.kind == "ds" and x.tags.get("need", ("",))[0] == "Q" and "offset:320" in x.text:
                qb2 = x.tags["need"][1]
                res.append(Ins("ds_read_b32 v255, v0", need=("Q", qb2 + 1), own=True, ghost=True))
        return res

    trace = [(x, 0) for x in q_alias(pro)]
    for t in range(NT - L):
        trace += [(x, t) for x in body]
    for i, tl in enumerate(tails):
        trace += [(x, NT - L + i) for x in tl]
    fast = trace + [(x, 0) for x in mid + epi + fin]
    errs = verify(fast, "fast")
    st = trace + [(x, 0) for x in mid + slow[0] + slow[1] * 2 + slow[2] + slow[3] * 2 + slow[4] + epi + fin]
    errs += [e for e in verify(st, "slow")]
    cyc, over = gap_report(body)
    text = []
    align = [Ins(".p2align 6"), Ins("L_loop:")]
    for x in pro + align + body + [y for tl in tails for y in tl] + mid + epi + fin + end + [y for p in slow for y in p]:
        if x.text:
            text.append(x.text if x.is_label else "    " + x.text)
    asm = HEADER.format(grid=256, block=256, lds=163840) + "\n".join(text) + "\n" + \
        FOOTER.format(nvgpr=512, nsgpr=102, accum=256, extra="")
    return asm, errs, cyc, over


if __name__ == "__main__":
    cfg = Cfg()
    outp = sys.argv[1]
    for kv in sys.argv[2:]:
        k, v = kv.split("=", 1)
        old = getattr(cfg, k)
        setattr(cfg, k, (" " + v if v else "") if isinstance(old, str) else type(old)(eval(v)))
    asm, errs, cyc, over = build(cfg)
    for e in errs[:40]:
        print("HAZARD", e)
    print(f"{outp}: {len(errs)} hazards; loop model cycles {cyc}; over-full gaps {over}")
    open(outp, "w").write(asm)
```

```python
import math
import struct
import sys

from asmlib import Ins, verify, gap_report
from common import HEADER, FOOTER

M16 = "v_mfma_f32_16x16x32_bf16"
NT = 32
SLOT = 12576
RG = 3104
PRIV0, PRIVSZ = 50432, 28160
STG = 400

vT, vK, vV, vD = 0, 1, 2, 3
vL = 4
vT1, vT2 = 10, 11
vONE, vP, vB, vO = 12, 16, 40, 80
sW = 3
sQ, sK, sV, sO, sC = 12, 16, 20, 24, 28
sScale, sMask, sGoff, sM0, sCnt, sDel, sRd, sTmp, sTmp2 = 32, 33, 34, 35, 36, 37, 38, 39, 40
sHi, sLo, sFwd, sBack, sM0w, sPriv = 41, 42, 43, 44, 45, 46
sFlag, sFlag2 = 48, 50
sT0, sT1, sT2, sT3, sC0, sC1, sWs = 56, 58, 60, 62, 64, 66, 68


def f32(x):
    return "0x%08x" % struct.unpack("<I", struct.pack("<f", x))[0]


def v4(n): return f"v[{n}:{n+3}]"
def v2(n): return f"v[{n}:{n+1}]"
def s4(n): return f"s[{n}:{n+3}]"
def s2(n): return f"s[{n}:{n+1}]"
def P(qb): return vP + 4 * qb
def B(i): return vB + 4 * i
def Q(qb, ks): return f"a[{qb*24+ks*4}:{qb*24+ks*4+3}]"


def O(qb, db):
    if qb >= 3:
        return ("v", vO + 4 * ((qb - 3) * 12 + db))
    i = qb * 12 + db
    if i < 8:
        return ("v", vO + 144 + 4 * i)
    return ("a", 144 + 4 * (i - 8))


def O4(qb, db):
    f, n = O(qb, db)
    return f"{f}[{n}:{n+3}]"


class Cfg:
    L = 4
    ldpol = " nt"
    stpol = " nt"
    stamps = False
    bar_gap = 55
    prefetch = True
    hi = 2.0 ** 40
    lo = 2.0 ** -20
    force_slow = False
    dbgstamp = False
    diag_until = 0


def kread(dst, kb, ks, rel, **kw):
    return Ins(f"ds_read_b128 {v4(dst)}, v{vK} offset:{kb*1536 + ks*64}", need=("K", rel), **kw)


def vread(dst, db, jj, **kw):
    return Ins(f"ds_read_b64_tr_b16 {v2(dst + 2*jj)}, v{vV} offset:{jj*1536 + db*32}", need=("V", 0), **kw)


class Gap:
    def __init__(self):
        self.sc, self.mem, self.valu, self.post = [], [], [], []

    def free(self):
        return 2 - sum(x.vslots for x in self.mem + self.valu) - len(self.post)

    def seq(self):
        return self.sc + self.mem + self.valu + self.post


def tile(cfg, dma, vm, last=False, loop_label=None):
    M = []
    k1 = [B(6), B(7), B(8), B(9), B(0), B(1)]
    rot = [B(2), B(3), B(4)]
    sblk = {}
    for kb in range(2):
        for qb in range(6):
            d = P(qb) if kb == 0 else rot[qb % 3]
            sblk[kb * 6 + qb] = d
            for ks in range(6):
                a = B(ks) if kb == 0 else k1[ks]
                M.append(Ins(f"{M16} {v4(d)}, {v4(a)}, {Q(qb, ks)}, {'0' if ks == 0 else v4(d)}"))
    ones_t = [B(2), B(9), B(0), B(1), B(0), B(1)]
    vblk = [B(5), B(6), B(7), B(8), B(3), B(4), B(5), B(2), B(6), B(7), B(8), B(9)]
    ones_at = {}

    def ones(qb):
        ones_at[qb] = len(M)
        M.append(Ins(f"{M16} {v4(ones_t[qb])}, {v4(vONE)}, {v4(P(qb))}, 0"))

    def pair(p):
        for qb in range(6):
            for db in (2 * p, 2 * p + 1):
                M.append(Ins(f"{M16} {O4(qb, db)}, {v4(vblk[db])}, {v4(P(qb))}, {O4(qb, db)}"))

    for qb in range(4):
        ones(qb)
    pair(0)
    ones(4)
    ones(5)
    for p in range(1, 6):
        pair(p)
    n = len(M)
    G = [Gap() for _ in range(n)]

    for c in range(12):
        kb, qb = divmod(c, 6)
        s = sblk[c]
        for r in range(4):
            G[6 * c + 8 + r].valu.append(Ins(f"v_exp_f32 v{s+r}, v{s+r}"))
        for h in range(2):
            G[6 * c + 12].valu.append(Ins(f"v_cvt_pk_bf16_f32 v{P(qb)+2*kb+h}, v{s+2*h}, v{s+2*h+1}"))
    for ks, g in zip(range(6), (0, 1, 2, 3, 31, 31)):
        G[g].mem.append(kread(k1[ks], 1, ks, 0))
    for db, g in enumerate((61, 67, 73, 79, 82, 84, 91, 93, 103, 105, 115, 117)):
        for jj in range(2):
            G[g].mem.append(vread(vblk[db], db, jj))
    for qb, g in enumerate((80, 80, 81, 81, 96, 96)):
        G[g].valu.append(Ins(f"v_add_f32 v{vL+qb}, v{vL+qb}, v{ones_t[qb]}"))
    if not last:
        for ks, g in zip(range(6), (126, 127, 128, 129, 130, 131)):
            G[g].mem.append(kread(B(ks), 0, ks, 1))

    bg = cfg.bar_gap
    G[bg].sc.append(Ins(f"s_waitcnt vmcnt({vm})"))
    G[bg].post.append(Ins("s_barrier"))

    chains = []
    if not last:
        chains.append((38, [Ins(f"s_cmp_eq_u32 s{sRd}, {10*SLOT}"),
                            Ins(f"s_cselect_b32 s{sDel}, s{sBack}, s{sFwd}"),
                            Ins(f"s_add_u32 s{sRd}, s{sRd}, s{sDel}")]))
        G[49].valu.append(Ins(f"v_add_u32 v{vK}, s{sDel}, v{vK}"))
        G[120].valu.append(Ins(f"v_add_u32 v{vV}, s{sDel}, v{vV}"))
    if dma:
        L = cfg.L
        for which, srd, g0 in (("K", sK, 86), ("V", sV, 107)):
            off = 0 if which == "K" else 1
            for p in range(3):
                g = g0 + (0, 8, 13)[p] if which == "K" else g0 + 3 * p
                G[g].mem.append(Ins(f"buffer_load_dwordx4 v{vD}, {s4(srd)}, s{sGoff} offen offset:{p*1024}{cfg.ldpol} lds",
                                    fill=(which, L, p, (lambda t, off=off: 2 * ((t + L) % 6) + off))))
        G[85].sc.append(Ins(f"s_mov_b32 m0, s{sM0}"))
        G[104].sc.append(Ins(f"s_add_u32 m0, s{sM0}, {SLOT}"))
        chains.append((118, [Ins(f"s_add_u32 s{sGoff}, s{sGoff}, 12288"),
                             Ins(f"s_cmp_eq_u32 s{sM0}, s{sM0w}"),
                             Ins(f"s_cselect_b32 s{sTmp}, s{sBack}, s{sFwd}"),
                             Ins(f"s_add_u32 s{sM0}, s{sM0}, s{sTmp}")]))
    if last:
        g = 100
        chk = [f"v_max3_f32 v{vT1}, v{vL}, v{vL+1}, v{vL+2}", f"v_min3_f32 v{vT2}, v{vL}, v{vL+1}, v{vL+2}",
               f"v_max3_f32 v{vT1}, v{vT1}, v{vL+3}, v{vL+4}", f"v_min3_f32 v{vT2}, v{vT2}, v{vL+3}, v{vL+4}",
               f"v_max_f32 v{vT1}, v{vT1}, v{vL+5}", f"v_min_f32 v{vT2}, v{vT2}, v{vL+5}",
               f"v_cmp_lt_f32 {s2(sFlag)}, s{sHi}, v{vT1}", f"v_cmp_gt_f32 {s2(sFlag2)}, s{sLo}, v{vT2}"]
        chk += [f"v_rcp_f32 v{vL+qb}, v{vL+qb}" for qb in range(6)]
        for x in chk:
            x = Ins(x)
            while G[g].free() < x.vslots or G[g].mem:
                g += 1
            G[g].valu.append(x)
        chains.append((g + 2, [Ins(f"s_or_b64 {s2(sFlag)}, {s2(sFlag)}, {s2(sFlag2)}")]))
    if loop_label:
        chains.append((140, [Ins(f"s_add_u32 s{sCnt}, s{sCnt}, 1"), Ins(f"s_cmp_lt_u32 s{sCnt}, {NT - cfg.L}")]))

    q = [(set(Ins(f"v_mov_b32 {v4(B(ks))}, 0").w), -20) for ks in range(6)]
    entry_wait = None
    for i in range(n + (0 if last else 1)):
        need = set(M[i % n].r)
        idx = max((j for j, (w, g) in enumerate(q) if w & need), default=None)
        if idx is not None:
            assert q[idx][1] < i - 1, f"read for MFMA {i} issued too late"
            vis = [j for j, (w, g) in enumerate(q) if g < i - 1]
            idx = max([idx] + [j for j in vis if q[j][1] <= i - 9])
            cnt = len(vis) - 1 - idx
            if i == 0:
                entry_wait = cnt
            else:
                assert not G[i - 1].sc, f"scalar slot of gap {i-1} taken"
                G[i - 1].sc.append(Ins(f"s_waitcnt lgkmcnt({cnt})"))
            q = q[idx + 1:]
        if i < n:
            q += [(set(x.w), i) for x in G[i].mem if x.kind == "ds"]
    assert entry_wait == 0

    for g, chain in chains:
        for x in chain:
            while G[g].sc:
                g += 1
            G[g].sc.append(x)
            g += 1
    if loop_label:
        G[n - 1].post.append(Ins(f"s_cbranch_scc1 {loop_label}"))

    def pad(prod, cons_gap, cons):
        def states():
            t = 0
            for g in range(prod, cons_gap + 1):
                if g > prod:
                    t += 1
                for x in G[g].seq():
                    if x is cons:
                        return t
                    t += x.states
            raise AssertionError
        for g in range(prod, cons_gap + 1):
            if states() < 8 and not G[g].sc:
                G[g].sc.append(Ins("s_nop 0"))
        for g in range(prod, cons_gap):
            while states() < 8 and G[g].sc[0].kind == "nop" and G[g].free() > G[g].sc[0].states - 1:
                G[g].sc[0] = Ins(f"s_nop {G[g].sc[0].states}")
        assert states() >= 8, (prod, cons_gap)

    for c in range(12):
        pad(6 * c + 5, 6 * c + 8, G[6 * c + 8].valu[0])
    for qb, g in enumerate((80, 80, 81, 81, 96, 96)):
        pad(ones_at[qb], g, [x for x in G[g].valu if x.w == [f"v{vL+qb}"]][0])

    out = []
    for m, g in zip(M, G):
        out.append(m)
        out += g.seq()
    return out


def lane_addrs(a, kbase, vbase):
    a(f"v_mbcnt_lo_u32_b32 v{vT}, -1, 0")
    a(f"v_mbcnt_hi_u32_b32 v{vT}, -1, v{vT}")
    a(f"v_and_b32 v{vT1}, 3, v{vT}")
    a(f"v_mul_u32_u24 v{vK}, {RG}, v{vT1}")
    a(f"v_lshlrev_b32 v{vV}, 3, v{vT1}")
    a(f"v_bfe_u32 v{vT1}, v{vT}, 2, 2")
    a(f"v_mul_u32_u24 v{vT2}, 384, v{vT1}")
    a(f"v_add_u32 v{vK}, v{vK}, v{vT2}")
    a(f"v_mul_u32_u24 v{vT2}, {RG}, v{vT1}")
    a(f"v_add_u32 v{vV}, v{vV}, v{vT2}")
    a(f"v_lshrrev_b32 v{vT1}, 4, v{vT}")
    a(f"v_lshl_add_u32 v{vK}, v{vT1}, 4, v{vK}")
    a(f"v_mul_u32_u24 v{vT2}, 384, v{vT1}")
    a(f"v_add_u32 v{vV}, v{vV}, v{vT2}")
    a(f"v_add_u32 v{vK}, {kbase}, v{vK}")
    a(f"v_add_u32 v{vV}, {vbase}, v{vV}")


def zero_acc(a):
    for qb in range(6):
        a(f"v_mov_b32 v{vL+qb}, 0")
    for qb in range(6):
        for db in range(12):
            f, n = O(qb, db)
            for r in range(4):
                a(f"v_mov_b32 v{n+r}, 0" if f == "v" else f"v_accvgpr_write_b32 a{n+r}, 0")


def prologue(cfg):
    out = []
    vmq = []

    def a(t, **k):
        x = Ins(t, **k)
        out.append(x)
        if x.kind == "vmem":
            vmq.append(k.get("vtag"))

    def wait_for(tag):
        last = max(i for i, t in enumerate(vmq) if t == tag)
        a(f"s_waitcnt vmcnt({len(vmq) - 1 - last})")
        del vmq[:last + 1]

    a("s_cmp_ge_u32 s2, 256")
    a("s_cbranch_scc1 L_end")
    a("s_load_dwordx4 s[4:7], s[0:1], 0")
    a("s_load_dwordx4 s[8:11], s[0:1], 16")
    if cfg.stamps:
        a(f"s_load_dwordx2 {s2(sWs)}, s[0:1], {32 if cfg.dbgstamp else 40}")
        a(f"s_memrealtime {s2(sT0)}")
    if cfg.prefetch:
        a(f"s_getpc_b64 {s2(sC)}")
        a("L_pc:")
        a(f"s_and_b32 s{sC+1}, s{sC+1}, 0xffff")
        a(f"s_mov_b32 s{sC+2}, L_slow-L_pc")
        a(f"s_mov_b32 s{sC+3}, 0x20000")
        a(f"v_lshlrev_b32 v{vT1}, 7, v0")
        a(f"buffer_load_dword v{vT2}, v{vT1}, {s4(sC)}, 0 offen", vtag="pf")
    a(f"v_lshrrev_b32 v{vK}, 6, v0")
    a(f"v_and_b32 v{vD}, 63, v0")
    a(f"v_readfirstlane_b32 s{sW}, v{vK}")
    a(f"v_lshlrev_b32 v{vD}, 4, v{vD}")
    a(f"s_mul_i32 s{sTmp}, s2, 147456")
    a(f"s_mul_i32 s{sTmp2}, s2, 393216")
    a(f"s_mul_i32 s{sGoff}, s{sW}, 3072")
    a(f"s_mul_i32 s{sM0}, s{sW}, {RG}")
    a(f"s_mul_i32 s{sCnt}, s{sW}, 36864")
    a(f"s_mov_b32 m0, s{sM0}")
    for r, n in ((sK, 393216), (sQ, 147456), (sV, 393216), (sO, 147456)):
        a(f"s_mov_b32 s{r+2}, {n}")
        a(f"s_mov_b32 s{r+3}, 0x20000")
    a("s_waitcnt lgkmcnt(0)")

    def srd(r, lo, off):
        a(f"s_add_u32 s{r}, s{lo}, s{off}")
        a(f"s_addc_u32 s{r+1}, s{lo+1}, 0")
        a(f"s_and_b32 s{r+1}, s{r+1}, 0xffff")

    srd(sK, 6, sTmp2)
    for p in range(3):
        a(f"buffer_load_dwordx4 v{vD}, {s4(sK)}, s{sGoff} offen offset:{p*1024}{cfg.ldpol} lds",
          fill=("K", 0, p, lambda t: 0), vtag="K0")
    srd(sQ, 4, sTmp)
    for j in range(12):
        a(f"s_add_u32 m0, s{sM0}, {(j+1)*SLOT}")
        if j:
            a(f"s_add_u32 s{sCnt}, s{sCnt}, 3072")
        else:
            a("s_nop 0")
        for p in range(3):
            a(f"buffer_load_dwordx4 v{vD}, {s4(sQ)}, s{sCnt} offen offset:{p*1024}{cfg.ldpol} lds",
              fill=("Q", j, p, lambda t, j=j: j + 1), vtag=("Q", j // 2))
    srd(sV, 8, sTmp2)
    srd(sO, 10, sTmp)
    a(f"s_mov_b32 s{sScale}, {f32(math.log2(math.e) / math.sqrt(192.0))}")
    a(f"s_mov_b32 s{sMask}, 0xffff0000")
    a(f"s_mov_b32 s{sHi}, {f32(cfg.hi)}")
    a(f"s_mov_b32 s{sLo}, {f32(cfg.lo)}")
    a(f"s_mov_b32 s{sFwd}, {2*SLOT}")
    a(f"s_mov_b32 s{sBack}, {(-10*SLOT) & 0xffffffff:#x}")
    a(f"s_add_u32 s{sM0w}, s{sM0}, {10*SLOT}")
    a(f"s_mul_i32 s{sPriv}, s{sW}, {PRIVSZ}")
    a(f"s_add_u32 s{sPriv}, s{sPriv}, {PRIV0}")
    a(f"s_mov_b32 s{sRd}, 0")
    if cfg.prefetch:
        wait_for("pf")
    lane_addrs(a, 0, SLOT)
    a(f"v_bfe_u32 v{vT1}, v{vT}, 3, 1")
    a(f"v_mul_u32_u24 v{vT1}, {SLOT}, v{vT1}")
    a(f"v_and_b32 v{vT2}, 7, v{vT}")
    a(f"v_mul_u32_u24 v{vT2}, 384, v{vT2}")
    a(f"v_add_u32 v{vT1}, v{vT1}, v{vT2}")
    a(f"v_lshrrev_b32 v{vT2}, 4, v{vT}")
    a(f"v_lshl_add_u32 v{vT1}, v{vT2}, 4, v{vT1}")
    a(f"s_add_u32 s{sTmp}, s{sM0}, {SLOT}")
    a(f"v_add_u32 v{vT}, s{sTmp}, v{vT1}")
    for r in range(4):
        a(f"v_mov_b32 v{vONE+r}, 0x3f803f80")
    zero_acc(a)
    seq = 1
    for qb in range(6):
        wait_for(("Q", qb))
        base = vP if qb % 2 == 0 else vB
        for ks in range(6):
            a(f"ds_read_b128 {v4(base + 4*ks)}, v{vT} offset:{ks*64}", need=("Q", 2 * qb), own=True)
        out.append(Ins("", ))
        if qb < 5:
            a(f"v_add_u32 v{vT}, {2*SLOT}, v{vT}")
        a("s_waitcnt lgkmcnt(0)", qdone=qb)
        for _ in range(2):
            if seq <= 2 * cfg.L - 1:
                t, isv = divmod(seq, 2)
                a(f"s_add_u32 m0, s{sM0}, {seq*SLOT}")
                a(f"s_add_u32 s{sTmp}, s{sGoff}, {t*12288}")
                for p in range(3):
                    a(f"buffer_load_dwordx4 v{vD}, {s4(sV if isv else sK)}, s{sTmp} offen offset:{p*1024}{cfg.ldpol} lds",
                      fill=("V" if isv else "K", t, p, lambda tt, seq=seq: seq), vtag=("S", seq), qfree=seq - 1)
                seq += 1
        for i in range(0, 24, 2):
            for j, t in ((i, vB + 24), (i + 1, vB + 26)):
                a(f"v_lshlrev_b32 v{t}, 16, v{base+j}")
                a(f"v_and_b32 v{t+1}, s{sMask}, v{base+j}")
                a(f"v_mul_f32 v{t}, s{sScale}, v{t}")
                a(f"v_mul_f32 v{t+1}, s{sScale}, v{t+1}")
            for j, t in ((i, vB + 24), (i + 1, vB + 26)):
                a(f"v_cvt_pk_bf16_f32 v{t}, v{t}, v{t+1}")
            for j, t in ((i, vB + 24), (i + 1, vB + 26)):
                a(f"v_accvgpr_write_b32 a{qb*24+j}, v{t}")
    a(f"s_add_u32 s{sGoff}, s{sGoff}, {cfg.L*12288}")
    a(f"s_add_u32 s{sM0}, s{sM0}, {2*(cfg.L % 6)*SLOT}")
    a(f"s_mov_b32 s{sCnt}, 0")
    if cfg.stamps:
        a(f"s_memrealtime {s2(sT1)}")
        a(f"s_memtime {s2(sC0)}")
        a("s_waitcnt lgkmcnt(0)")
    a("s_barrier")
    for ks in range(6):
        out.append(kread(B(ks), 0, ks, 0))
    a("s_waitcnt lgkmcnt(0)")
    return out


def epilogue(cfg):
    out = []

    def a(t, **k):
        out.append(Ins(t, **k))

    vW, vR, vG = vK, vV, vT
    a(f"v_mbcnt_lo_u32_b32 v{vT1}, -1, 0")
    a(f"v_mbcnt_hi_u32_b32 v{vT1}, -1, v{vT1}")
    a(f"v_and_b32 v{vT2}, 15, v{vT1}")
    a(f"v_mul_u32_u24 v{vW}, {STG}, v{vT2}")
    a(f"v_lshrrev_b32 v{vT2}, 4, v{vT1}")
    a(f"v_lshl_add_u32 v{vW}, v{vT2}, 3, v{vW}")
    a(f"v_add_u32 v{vW}, s{sPriv}, v{vW}")
    a(f"v_lshrrev_b32 v{vT2}, 3, v{vT1}")
    a(f"v_mul_u32_u24 v{vR}, {STG}, v{vT2}")
    a(f"v_mul_u32_u24 v{vG}, 384, v{vT2}")
    a(f"v_and_b32 v{vT2}, 7, v{vT1}")
    a(f"v_lshl_add_u32 v{vR}, v{vT2}, 4, v{vR}")
    a(f"v_lshl_add_u32 v{vG}, v{vT2}, 4, v{vG}")
    a(f"v_add_u32 v{vR}, s{sPriv}, v{vR}")
    a(f"s_mul_i32 s{sTmp}, s{sW}, 36864")

    def conv(qb, dbs):
        buf = (qb % 4) * 16 * STG
        for db in dbs:
            f, n = O(qb, db)
            if f == "a":
                t = vB + 24 + 4 * (db % 4)
                for r in range(4):
                    a(f"v_accvgpr_read_b32 v{t+r}, a{n+r}")
                n = t
            for r in range(4):
                a(f"v_mul_f32 v{n+r}, v{vL+qb}, v{n+r}")
            a(f"v_cvt_pk_bf16_f32 v{n}, v{n}, v{n+1}")
            a(f"v_cvt_pk_bf16_f32 v{n+1}, v{n+2}, v{n+3}")
            a(f"ds_write_b64 v{vW}, {v2(n)} offset:{buf + 32*db}")

    def rb(qb):
        return vP if qb % 2 == 0 else vB

    def reads(qb):
        buf = (qb % 4) * 16 * STG
        for i in range(6):
            h, t = divmod(i, 3)
            a(f"ds_read_b128 {v4(rb(qb) + 4*i)}, v{vR} offset:{buf + h*8*STG + 128*t}")

    def stores(qb):
        for i in range(6):
            h, t = divmod(i, 3)
            a(f"buffer_store_dwordx4 {v4(rb(qb) + 4*i)}, v{vG}, {s4(sO)}, s{sTmp} offen offset:{h*3072 + 128*t}{cfg.stpol}")
        if qb < 5:
            a(f"s_add_u32 s{sTmp}, s{sTmp}, 6144")

    conv(0, range(12))
    for qb in range(6):
        a("s_waitcnt lgkmcnt(0)")
        reads(qb)
        if qb < 5:
            conv(qb + 1, range(0, 3))
            a("s_waitcnt lgkmcnt(3)")
        else:
            a("s_waitcnt lgkmcnt(0)")
        stores(qb)
        if qb < 5:
            conv(qb + 1, range(3, 12))
    return out


def slow_path(cfg):
    parts = []
    out = []

    def a(t, **k):
        out.append(Ins(t, **k))

    def cut():
        parts.append(list(out))
        out.clear()

    m = [B(9), B(9) + 1, B(9) + 2, B(9) + 3, vT1, vT2]
    S = B(6)

    def load(srd, base):
        for rg in range(4):
            a(f"s_add_u32 m0, s{sPriv}, {base + rg*RG}")
            a(f"s_add_u32 s{sTmp}, s{sGoff}, {rg*3072}")
            for p in range(3):
                a(f"buffer_load_dwordx4 v{vD}, {s4(srd)}, s{sTmp} offen offset:{p*1024} lds")

    def kfrags(kb):
        for ks in range(6):
            a(f"ds_read_b128 {v4(B(ks))}, v{vK} offset:{kb*1536 + ks*64}")
        a("s_waitcnt lgkmcnt(0)")

    def chain(qb):
        for ks in range(6):
            a(f"{M16} {v4(S)}, {v4(B(ks))}, {Q(qb, ks)}, {'0' if ks == 0 else v4(S)}")
        a("s_nop 7")

    a("L_slow:")
    a("s_nop 7")
    a(f"s_add_u32 s{sTmp2}, s{sPriv}, {4*RG}")
    lane_addrs(a, f"s{sPriv}", f"s{sTmp2}")
    a(f"v_xor_b32 v{vP}, 16, v{vT}")
    a(f"v_lshlrev_b32 v{vP}, 2, v{vP}")
    a(f"v_xor_b32 v{vP+1}, 32, v{vT}")
    a(f"v_lshlrev_b32 v{vP+1}, 2, v{vP+1}")
    for qb in range(6):
        a(f"v_mov_b32 v{m[qb]}, 0xff800000")
    a(f"s_mov_b32 s{sGoff}, 0")
    cut()
    a("L_slow_max:")
    load(sK, 0)
    a("s_waitcnt vmcnt(0)")
    for kb in range(2):
        kfrags(kb)
        for qb in range(6):
            chain(qb)
            a(f"v_max3_f32 v{m[qb]}, v{m[qb]}, v{S}, v{S+1}")
            a(f"v_max3_f32 v{m[qb]}, v{m[qb]}, v{S+2}, v{S+3}")
    a(f"s_add_u32 s{sGoff}, s{sGoff}, 12288")
    a(f"s_cmp_lt_u32 s{sGoff}, 393216")
    a("s_cbranch_scc1 L_slow_max")
    cut()
    for x in range(2):
        for qb in range(6):
            a(f"ds_bpermute_b32 v{vP+4+qb}, v{vP+x}, v{m[qb]}")
        a("s_waitcnt lgkmcnt(0)")
        for qb in range(6):
            a(f"v_max_f32 v{m[qb]}, v{m[qb]}, v{vP+4+qb}")
    zero_acc(a)
    a(f"s_mov_b32 s{sGoff}, 0")
    cut()
    a("L_slow_main:")
    load(sK, 0)
    load(sV, 4 * RG)
    a("s_waitcnt vmcnt(0)")
    for kb in range(2):
        kfrags(kb)
        for qb in range(6):
            chain(qb)
            for r in range(4):
                a(f"v_sub_f32 v{S+r}, v{S+r}, v{m[qb]}")
            for r in range(4):
                a(f"v_exp_f32 v{S+r}, v{S+r}")
            a("s_nop 0")
            for h in range(2):
                a(f"v_cvt_pk_bf16_f32 v{P(qb)+2*kb+h}, v{S+2*h}, v{S+2*h+1}")
    a("s_nop 1")
    for qb in range(6):
        a(f"{M16} {v4(S)}, {v4(vONE)}, {v4(P(qb))}, 0")
        a("s_nop 7")
        a(f"v_add_f32 v{vL+qb}, v{vL+qb}, v{S}")
    for db in range(12):
        t = B(7 + db % 2)
        for jj in range(2):
            a(f"ds_read_b64_tr_b16 {v2(t + 2*jj)}, v{vV} offset:{jj*1536 + db*32}")
        a("s_waitcnt lgkmcnt(0)")
        for qb in range(6):
            a(f"{M16} {O4(qb, db)}, {v4(t)}, {v4(P(qb))}, {O4(qb, db)}")
    a(f"s_add_u32 s{sGoff}, s{sGoff}, 12288")
    a(f"s_cmp_lt_u32 s{sGoff}, 393216")
    a("s_cbranch_scc1 L_slow_main")
    cut()
    for qb in range(6):
        a(f"v_rcp_f32 v{vL+qb}, v{vL+qb}")
    a("s_nop 7")
    a("s_branch L_epi")
    cut()
    return parts


def build(cfg):
    L = cfg.L
    pro = prologue(cfg)
    body = tile(cfg, True, 3 * (2 * L - 3), loop_label="L_loop")
    tails = []
    for t in range(NT - L, NT):
        allowed = max(0, 63 - min(63, 2 * t + 2))
        tails.append(tile(cfg, False, 3 * allowed, last=(t == NT - 1)))
    mid = []
    if cfg.stamps:
        mid += [Ins(f"s_memrealtime {s2(sT2)}"), Ins(f"s_memtime {s2(sC1)}"), Ins("s_waitcnt lgkmcnt(0)")]
    if cfg.force_slow:
        mid += [Ins("s_branch L_slow")]
    else:
        mid += [Ins(f"s_cmp_lg_u64 {s2(sFlag)}, 0"), Ins("s_cbranch_scc1 L_slow")]
    epi = [Ins("L_epi:")] + epilogue(cfg)
    fin = []
    if cfg.stamps:
        fin = [Ins(x) for x in (
            "s_waitcnt vmcnt(0)", f"s_memrealtime {s2(sT3)}", "s_waitcnt lgkmcnt(0)",
            f"s_and_b32 s{sWs+1}, s{sWs+1}, 0xffff", f"s_mov_b32 s{sWs+2}, 402653184", f"s_mov_b32 s{sWs+3}, 0x20000",
            f"s_lshl_b32 s{sTmp}, s2, 2", f"s_add_u32 s{sTmp}, s{sTmp}, s{sW}", f"s_lshl_b32 s{sTmp}, s{sTmp}, 5",
            f"s_sub_u32 s{sC1}, s{sC1}, s{sC0}",
            f"v_mov_b32 v16, s{sT0}", f"v_mov_b32 v17, s{sT1}", f"v_mov_b32 v18, s{sT2}", f"v_mov_b32 v19, s{sT3}",
            f"v_mov_b32 v20, s{sC1}", "v_mov_b32 v21, 0", "s_mov_b64 exec, 1",
            f"buffer_store_dwordx4 v[16:19], v21, {s4(sWs)}, s{sTmp} offen",
            f"buffer_store_dword v20, v21, {s4(sWs)}, s{sTmp} offen offset:16")]
    if cfg.dbgstamp:
        fin = [Ins(x) for x in (
            "s_waitcnt vmcnt(0)", f"s_memrealtime {s2(sT3)}", "s_waitcnt lgkmcnt(0)",
            f"s_and_b32 s{sWs+1}, s{sWs+1}, 0xffff", f"s_mov_b32 s{sWs+2}, 256", f"s_mov_b32 s{sWs+3}, 0x20000",
            f"s_sub_u32 s{sC1}, s{sC1}, s{sC0}", f"s_not_b32 s{sTmp}, s{sT0}", f"s_not_b32 s{sTmp2}, s{sT1}",
            f"s_sub_u32 s{sC0}, s{sT2}, s{sT1}",
            f"v_mov_b32 v16, s{sTmp}", f"v_mov_b32 v17, s{sT1}", f"v_mov_b32 v18, s{sT2}", f"v_mov_b32 v19, s{sT3}",
            f"v_mov_b32 v20, s{sC1}", f"v_mov_b32 v22, s{sTmp2}", f"v_mov_b32 v23, s{sC0}", f"v_mov_b32 v24, s{sT0}", "v_mov_b32 v21, 0", "s_mov_b64 exec, 1")]
        fin += [Ins(f"buffer_atomic_umax v{r}, v21, {s4(sWs)}, 0 offen offset:{4*i}") for i, r in enumerate((16, 24, 22, 17, 18, 19))]
        fin += [Ins(f"buffer_atomic_add v{r}, v21, {s4(sWs)}, 0 offen offset:{24+4*i}") for i, r in enumerate((20, 23))]
    if cfg.diag_until:
        fin = [Ins(x) for x in ("s_waitcnt vmcnt(0)", "L_diag:", f"s_memrealtime {s2(sT3)}", "s_waitcnt lgkmcnt(0)",
                                f"s_sub_u32 s{sTmp}, s{sT3}, s{sT0}", f"s_cmp_lt_u32 s{sTmp}, {cfg.diag_until}", "s_cbranch_scc1 L_diag")]
    end = [Ins("L_end:"), Ins("s_endpgm")]
    slow = slow_path(cfg)

    def q_alias(seq):
        res = []
        for x in seq:
            res.append(x)
            if x.kind == "ds" and x.tags.get("need", ("",))[0] == "Q" and "offset:320" in x.text:
                qb2 = x.tags["need"][1]
                res.append(Ins("ds_read_b32 v255, v0", need=("Q", qb2 + 1), own=True, ghost=True))
        return res

    trace = [(x, 0) for x in q_alias(pro)]
    for t in range(NT - L):
        trace += [(x, t) for x in body]
    for i, tl in enumerate(tails):
        trace += [(x, NT - L + i) for x in tl]
    fast = trace + [(x, 0) for x in mid + epi + fin]
    errs = verify(fast, "fast")
    st = trace + [(x, 0) for x in mid + slow[0] + slow[1] * 2 + slow[2] + slow[3] * 2 + slow[4] + epi + fin]
    errs += [e for e in verify(st, "slow")]
    cyc, over = gap_report(body)
    text = []
    align = [Ins(".p2align 6"), Ins("L_loop:")]
    for x in pro + align + body + [y for tl in tails for y in tl] + mid + epi + fin + end + [y for p in slow for y in p]:
        if x.text:
            text.append(x.text if x.is_label else "    " + x.text)
    asm = HEADER.format(grid=256, block=256, lds=163840) + "\n".join(text) + "\n" + \
        FOOTER.format(nvgpr=512, nsgpr=102, accum=256, extra="")
    return asm, errs, cyc, over


if __name__ == "__main__":
    cfg = Cfg()
    outp = sys.argv[1]
    for kv in sys.argv[2:]:
        k, v = kv.split("=", 1)
        old = getattr(cfg, k)
        setattr(cfg, k, (" " + v if v else "") if isinstance(old, str) else type(old)(eval(v)))
    asm, errs, cyc, over = build(cfg)
    for e in errs[:40]:
        print("HAZARD", e)
    print(f"{outp}: {len(errs)} hazards; loop model cycles {cyc}; over-full gaps {over}")
    open(outp, "w").write(asm)
```

```python
import re

REG_RE = re.compile(r"^(-?)(?:abs\()?([vas])(?:\[(\d+):(\d+)\]|(\d+))\)?$")
TRANS = ("v_exp_f32", "v_log_f32", "v_rcp_f32", "v_rsq_f32", "v_sqrt_f32")
NO_DST_S = ("s_cmp", "s_cbranch", "s_waitcnt", "s_barrier", "s_nop", "s_branch", "s_endpgm", "s_bitcmp", "s_setprio")


def regs_of(tok):
    tok = tok.strip()
    if tok in ("m0", "scc"):
        return [tok]
    if tok == "vcc":
        return ["vcc"]
    if tok == "exec":
        return ["exec"]
    m = REG_RE.match(tok)
    if not m:
        return []
    f = m.group(2)
    if m.group(3) is not None:
        return [f"{f}{i}" for i in range(int(m.group(3)), int(m.group(4)) + 1)]
    return [f"{f}{m.group(5)}"]


class Ins:
    def __init__(self, text, **tags):
        self.text = text
        self.tags = tags
        t = text.split(";")[0].strip()
        self.is_label = t.endswith(":")
        self.is_dir = t.startswith(".")
        self.op = "" if (self.is_label or self.is_dir or not t) else t.split()[0]
        rest = t[len(self.op):].strip() if self.op else ""
        ops = [x.strip() for x in rest.split(",")] if rest else []
        mods = []
        if "op_sel" in rest:
            rest = rest[:rest.index("op_sel")].strip()
            ops = [x.strip() for x in rest.split(",")]
        if ops:
            parts = ops[-1].split()
            ops[-1] = parts[0]
            mods = parts[1:]
        self.ops, self.mods = ops, mods
        op = self.op
        R = [regs_of(x) for x in ops]
        flat = lambda xs: [r for x in xs for r in x]
        self.w, self.r = [], []
        self.kind = "none"
        if not op:
            return
        if op.startswith("v_mfma"):
            self.kind = "mfma"
            self.w = R[0]
            self.a, self.b, self.c = R[1], R[2], R[3]
            self.r = flat(R[1:])
            self.passes = 8 if "32x32x16" in op else (4 if "16x16x32" in op else 2)
        elif op.startswith("v_permlane") and "swap" in op:
            self.kind = "valu"
            self.w = flat(R)
            self.r = flat(R)
        elif op.startswith("v_"):
            self.kind = "trans" if op.startswith(TRANS) else "valu"
            self.w = R[0]
            self.r = flat(R[1:])
            if op.startswith("v_cndmask") and len(ops) == 3:
                self.r.append("vcc")
        elif op.startswith("ds_read") or op.startswith("ds_bpermute"):
            self.kind = "ds"
            self.w = R[0]
            self.r = flat(R[1:])
        elif op.startswith("ds_write"):
            self.kind = "ds"
            self.r = flat(R)
        elif op.startswith("buffer_load"):
            self.kind = "vmem"
            if "lds" in mods:
                self.r = flat(R) + ["m0"]
                self.dma = True
            else:
                self.w = R[0]
                self.r = flat(R[1:])
        elif op.startswith(("buffer_store", "buffer_atomic")):
            self.kind = "vmem"
            self.r = flat(R)
            self.store_data = R[0]
        elif op.startswith(("s_load", "s_memtime", "s_memrealtime")):
            self.kind = "smem"
            self.w = R[0]
            self.r = flat(R[1:])
        elif op == "s_waitcnt":
            self.kind = "wait"
        elif op == "s_barrier":
            self.kind = "barrier"
        elif op == "s_nop":
            self.kind = "nop"
        elif op.startswith(("s_cbranch", "s_branch", "s_endpgm")):
            self.kind = "branch"
        elif op.startswith("s_"):
            self.kind = "salu"
            if op.startswith(NO_DST_S):
                self.r = flat(R)
            else:
                self.w = R[0]
                self.r = flat(R[1:])
                if "saveexec" in op:
                    self.w = self.w + ["exec"]
        else:
            raise ValueError("unknown instruction: " + text)

    @property
    def states(self):
        if self.kind == "none":
            return 0
        if self.kind == "nop":
            return int(self.ops[0]) + 1
        return 1

    @property
    def vslots(self):
        if self.kind == "trans":
            return 2
        if self.kind in ("valu", "ds", "vmem"):
            return 1
        return 0

    def waits(self):
        t = self.text.split(";")[0]
        vm = re.search(r"vmcnt\((\d+)\)", t)
        lg = re.search(r"lgkmcnt\((\d+)\)", t)
        return (int(vm.group(1)) if vm else None, int(lg.group(1)) if lg else None)


XDL_TO_VALU = {2: 5, 4: 8, 8: 12}
XDL_C_OVERLAP = {2: 4, 4: 6, 8: 10}
XDL_C_SAME = {2: 2, 4: 0, 8: 0}
XDL_C_WAR = {2: 1, 4: 3, 8: 7}


def verify(trace, name=""):
    errs = []
    pos = 0
    lastw = {}
    lastc = {}
    laststore = {}
    lds_q, vm_q = [], []
    smem_out = set()
    retired_fills, published = set(), set()
    slot_content = {}
    reads_done_at_barrier = {}
    pending_reads = {}
    barriers = 0
    setup = {}
    ghosts = {}

    def err(i, ins, msg):
        errs.append(f"{name}[{i}] {ins.text.strip()} :: {msg}")

    for i, ent in enumerate(trace):
        ins, tile = ent[0], ent[1]
        nxt = ent[2] if len(ent) > 2 else None
        k = ins.kind
        if "ghost_need" in ins.tags:
            key = ins.tags["ghost_need"]
            if [p for p in range(3) if (key, p) not in retired_fills]:
                err(i, ins, f"reads {key} before it landed")
            ghosts[key] = (key[0], key[1] - 1)
        if k == "none":
            continue
        for r in ins.w:
            setup.pop(r, None)
        if "sets" in ins.tags:
            setup[ins.w[0]] = ins.tags["sets"]
        for r, want in ins.tags.get("uses", ()):
            if setup.get(r) != want:
                err(i, ins, f"{r} holds set-up {setup.get(r)}, expected {want}")
        touched = set(ins.r) | set(ins.w)
        for q, nm in ((lds_q, "lgkmcnt"), (vm_q, "vmcnt")):
            for e in q:
                hit = touched & set(e["w"])
                if hit and not (ins.tags.get("dummy") and e.get("dummy")):
                    err(i, ins, f"touches {sorted(hit)[:3]} with outstanding {nm} op: {e['t']}")
        if touched & smem_out:
            err(i, ins, f"touches outstanding smem dst {sorted(touched & smem_out)}")

        def dist(r):
            return pos - lastw[r][0] - 1

        for r in ins.r:
            if r not in lastw:
                if r[0] in "vas" and r not in ("s0", "s1", "s2", "v0", "vcc", "scc"):
                    err(i, ins, f"reads never-written {r}")
                continue
            p, wk, wi = lastw[r]
            d = dist(r)
            if wk == "mfma":
                n = wi.passes
                if k == "mfma":
                    if r in ins.a or r in ins.b:
                        if d < XDL_TO_VALU[n]:
                            err(i, ins, f"MFMA D->A/B {r} dist {d}")
                    elif ins.c == wi.w and ins.passes == n:
                        if d < XDL_C_SAME[n]:
                            err(i, ins, f"MFMA D->C same {r} dist {d}")
                    elif d < XDL_C_OVERLAP[n]:
                        err(i, ins, f"MFMA D->C overlap {r} dist {d}")
                elif d < XDL_TO_VALU[n]:
                    err(i, ins, f"MFMA D->read {r} dist {d}")
            if wk in ("valu", "trans"):
                if k == "mfma" and d < 2:
                    err(i, ins, f"VALU->MFMA {r} dist {d}")
                if wk == "trans" and k == "valu" and d < 1:
                    err(i, ins, f"trans->VALU {r} dist {d}")
                if ins.op.startswith("v_permlane") and d < 2:
                    err(i, ins, f"VALU->permlane {r} dist {d}")
                if ins.op.startswith(("v_readfirstlane", "v_readlane")) and r[0] == "v" and d < 1:
                    err(i, ins, f"VALU->readlane {r} dist {d}")
                if (r[0] == "s" or r == "vcc") and k == "vmem" and d < 5:
                    err(i, ins, f"VALU sgpr->VMEM {r} dist {d}")
                if (r[0] == "s" or r == "vcc") and k in ("valu", "trans") and d < 2:
                    err(i, ins, f"VALU sgpr->VALU {r} dist {d}")
                if (r[0] == "s" or r == "vcc") and k == "salu" and d < 1:
                    err(i, ins, f"VALU sgpr->SALU {r} dist {d} (padded by policy)")
            if r == "m0" and wk == "salu" and d < 1:
                err(i, ins, "m0 write -> DMA dist 0")
        for r in ins.w:
            if r in lastw and lastw[r][1] == "mfma" and k != "mfma":
                n = lastw[r][2].passes
                if dist(r) < XDL_TO_VALU[n]:
                    err(i, ins, f"MFMA D->overwrite {r} dist {dist(r)}")
            if k in ("valu", "trans") and r in lastc:
                p, n = lastc[r]
                if pos - p - 1 < XDL_C_WAR[n]:
                    err(i, ins, f"MFMA C read -> VALU write {r}")
            if r in laststore and pos - laststore[r] - 1 < 2:
                err(i, ins, f"wide store data overwritten {r}")

        if k == "wait":
            vm, lg = ins.waits()
            if vm is not None:
                while len(vm_q) > vm:
                    e = vm_q.pop(0)
                    if "fill" in e:
                        retired_fills.add(e["fill"])
            if lg is not None:
                if smem_out and lg != 0:
                    err(i, ins, "counted lgkmcnt with SMEM outstanding")
                while len(lds_q) > lg:
                    e = lds_q.pop(0)
                    if "need" in e:
                        pending_reads[e["need"]] -= 1
                if lg == 0:
                    smem_out.clear()
        elif k == "barrier":
            barriers += 1
            published |= retired_fills
            for key, n in pending_reads.items():
                if n == 0:
                    reads_done_at_barrier.setdefault(key, barriers)
        elif k == "ds":
            e = {"w": ins.w, "t": ins.text.strip()}
            need = ins.tags.get("need")
            if need is not None:
                key = (need[0], need[1] + tile)
                own = ins.tags.get("own")
                if not ins.tags.get("garbage_ok"):
                    missing = [p for p in range(3) if (key, p) not in (retired_fills if own else published)]
                    if missing:
                        err(i, ins, f"reads {key} before it is visible")
                    if key not in slot_content.values():
                        err(i, ins, f"reads {key} after its slot was refilled")
                e["need"] = key
                pending_reads[key] = pending_reads.get(key, 0) + 1
                reads_done_at_barrier.pop(key, None)
            lds_q.append(e)
            if len(lds_q) > 15:
                err(i, ins, "more than 15 LDS ops outstanding")
        elif k == "vmem":
            e = {"w": ins.w, "t": ins.text.strip(), "dummy": ins.tags.get("dummy")}
            fill = ins.tags.get("fill")
            if fill is not None:
                if fill[1] is None:
                    key = (fill[0], nxt)
                    slot = fill[3](nxt)
                elif ins.tags.get("abs_fill"):
                    key = (fill[0], fill[1])
                    slot = fill[3](tile)
                else:
                    key = (fill[0], fill[1] + tile)
                    slot = fill[3](tile)
                e["fill"] = (key, fill[2])
                old = slot_content.get(slot)
                if old is not None and old != key:
                    if old[0] == "Q":
                        if pending_reads.get(ghosts.get(old, old), 1) != 0:
                            err(i, ins, f"DMA overwrites {old} before own reads completed")
                    elif old not in reads_done_at_barrier:
                        err(i, ins, f"DMA overwrites {old} (slot {slot}) without a barrier after its last read")
                slot_content[slot] = key
            vm_q.append(e)
            if len(vm_q) > 63:
                err(i, ins, "more than 63 VMEM ops outstanding")
            if hasattr(ins, "store_data") and len(ins.store_data) >= 3:
                for r in ins.store_data:
                    laststore[r] = pos
        elif k == "smem":
            smem_out |= set(ins.w)

        if k == "mfma":
            for r in ins.c:
                lastc[r] = (pos, ins.passes)
        for r in ins.w:
            lastw[r] = (pos + ins.states - 1, k, ins)
        pos += ins.states
    return errs


def gap_report(seq):
    cyc, over, cur = 0, [], None
    gaps = []
    for ins in seq:
        if ins.kind == "mfma":
            cur = []
            gaps.append(cur)
        elif ins.kind != "none" and cur is not None:
            cur.append(ins)
    for g, fill in enumerate(gaps):
        t = 4
        prev_valu = False
        for ins in fill:
            if ins.vslots:
                t = max(t, 8)
                if ins.kind in ("ds", "vmem") and prev_valu:
                    t += 8
                t += 4 * ins.vslots
                prev_valu = ins.kind in ("valu", "trans")
            else:
                t += 4 * ins.states
        if t > 16:
            over.append((g, t))
        cyc += max(16, t)
    return cyc, over
```

```python
import math
import struct
import sys

from asmlib import Ins, verify, gap_report
from common import HEADER, FOOTER

M16 = "v_mfma_f32_16x16x32_bf16"
NT = 32
SLOT = 12576
RG = 3104
PRIV0, PRIVSZ = 50432, 28160
STG = 400

vT, vK, vV, vD = 0, 1, 2, 3
vL = 4
vT1, vT2 = 10, 11
vONE, vP, vB, vO = 12, 16, 40, 80
sW = 3
sQ, sK, sV, sO, sC = 12, 16, 20, 24, 28
sScale, sMask, sG0, sM0, sCnt, sDel, sRd, sTmp, sTmp2 = 32, 33, 34, 35, 36, 37, 38, 39, 40
sHi, sLo, sFwd, sBack, sMw, sPriv, sGd = 41, 42, 43, 44, 45, 46, 47
sFlag, sFlag2, sMd, sOo = 48, 50, 52, 53
sT0, sT1, sT2, sT3, sC0, sC1, sWs = 56, 58, 60, 62, 64, 66, 68


def f32(x):
    return "0x%08x" % struct.unpack("<I", struct.pack("<f", x))[0]


def v4(n): return f"v[{n}:{n+3}]"
def v2(n): return f"v[{n}:{n+1}]"
def s4(n): return f"s[{n}:{n+3}]"
def s2(n): return f"s[{n}:{n+1}]"
def P(qb): return vP + 4 * qb
def B(i): return vB + 4 * i
def Q(qb, ks): return f"a[{qb*24+ks*4}:{qb*24+ks*4+3}]"


_O_AGPR = [(qb, db) for qb in (5, 4, 3) for db in range(12)][:28]
_O_VGPR = [(qb, db) for qb in range(6) for db in range(12) if (qb, db) not in _O_AGPR]


def O(qb, db):
    if (qb, db) in _O_AGPR:
        return ("a", 144 + 4 * _O_AGPR.index((qb, db)))
    return ("v", vO + 4 * _O_VGPR.index((qb, db)))


def O4(qb, db):
    f, n = O(qb, db)
    return f"{f}[{n}:{n+3}]"


class Cfg:
    ldpol = " nt"
    stpol = " nt"
    stamps = False
    bar_gap = 55
    pf_bytes = 0
    hi = 2.0 ** 40
    lo = 2.0 ** -20
    force_slow = False
    diag_until = 0
    pro_last = 3
    ramp = (5, 8, 11)
    L = 3
    snake = True
    overlap_epi = True
    pkmul = False
    first_bar = 120
    probe = 0
    win = 4


def kread(dst, kb, ks, rel):
    return Ins(f"ds_read_b128 {v4(dst)}, v{vK} offset:{kb*1536 + ks*64}", need=("K", rel))


def vread(dst, db, jj):
    return Ins(f"ds_read_b64_tr_b16 {v2(dst + 2*jj)}, v{vV} offset:{jj*1536 + db*32}", need=("V", 0))


def static_fill(cfg, seq):
    t, isv = divmod(seq, 2)
    slot = 2 * (t % 6) + isv
    pre = [Ins(f"s_add_u32 s{sTmp}, s{sG0}, {t*12288}", sets=seq), Ins(f"s_add_u32 m0, s{sM0}, {slot*SLOT}", sets=seq)]
    ops = [Ins(f"buffer_load_dwordx4 v{vD}, {s4(sV if isv else sK)}, s{sTmp} offen offset:{p*1024}{cfg.ldpol} lds",
               fill=("V" if isv else "K", t, p, lambda tt, slot=slot: slot), abs_fill=True, vtag=("S", seq),
               uses=((f"s{sTmp}", seq), ("m0", seq))) for p in range(3)]
    return pre, ops


def dyn_fill(cfg, isv):
    pre = [Ins(f"s_add_u32 m0, s{sMd}, {SLOT}" if isv else f"s_mov_b32 m0, s{sMd}", sets=("dyn", isv))]
    ops = [Ins(f"buffer_load_dwordx4 v{vD}, {s4(sV if isv else sK)}, s{sGd} offen offset:{p*1024}{cfg.ldpol} lds",
               fill=("V" if isv else "K", cfg.L, p, lambda tt: 2 * ((tt + cfg.L) % 6) + isv),
               uses=(("m0", ("dyn", isv)),)) for p in range(3)]
    return pre, ops


class Gap:
    def __init__(self):
        self.sc, self.mem, self.valu, self.post = [], [], [], []

    def free(self):
        return 2 - sum(x.vslots for x in self.mem + self.valu) - len(self.post)

    def seq(self):
        return self.sc + self.mem + self.valu + self.post


def epi_addr():
    first = [f"v_mbcnt_lo_u32_b32 v{vT1}, -1, 0", f"v_mbcnt_hi_u32_b32 v{vT1}, -1, v{vT1}",
             f"v_and_b32 v{vT2}, 15, v{vT1}", f"v_mul_u32_u24 v{vK}, {STG}, v{vT2}",
             f"v_lshrrev_b32 v{vT2}, 4, v{vT1}", f"v_lshl_add_u32 v{vK}, v{vT2}, 3, v{vK}", f"v_add_u32 v{vK}, s{sPriv}, v{vK}",
             f"v_lshrrev_b32 v{vT2}, 3, v{vT1}", f"v_and_b32 v{vT1}, 7, v{vT1}", f"v_lshlrev_b32 v{vT1}, 4, v{vT1}",
             f"v_mad_u32_u24 v{vT}, v{vT2}, s{sTmp2}, v{vT1}", f"v_lshlrev_b32 v{vT2}, 4, v{vT2}", f"v_add_u32 v{vT2}, v{vT2}, v{vT}"]
    second = [f"v_add_u32 v{vV}, s{sPriv}, v{vT2}"]
    return [Ins(x) for x in first], [Ins(x) for x in second]


def conv_block(cfg, qb, db, pk=False):
    res = []
    f, n = O(qb, db)
    if f == "a":
        t = vB + 24 + 4 * (db % 4)
        res += [f"v_accvgpr_read_b32 v{t+r}, a{n+r}" for r in range(4)]
        n = t
    if pk:
        sel = "op_sel:[1,0] op_sel_hi:[1,1]" if qb % 2 else "op_sel:[0,0] op_sel_hi:[0,1]"
        res += [f"v_pk_mul_f32 {v2(n+r)}, {v2(vL + (qb & ~1))}, {v2(n+r)} {sel}" for r in (0, 2)]
    else:
        res += [f"v_mul_f32 v{n+r}, v{vL+qb}, v{n+r}" for r in range(4)]
    res += [f"v_cvt_pk_bf16_f32 v{n}, v{n}, v{n+1}", f"v_cvt_pk_bf16_f32 v{n+1}, v{n+2}, v{n+3}",
            f"ds_write_b64 v{vK}, {v2(n)} offset:{(qb % 4) * 16 * STG + 32*db}"]
    return [Ins(x) for x in res]


def tile(cfg, kind, fills, vm, loop=None):
    first, last = kind == "first", kind == "last"
    ovl = last and cfg.overlap_epi
    M = []
    k1 = [B(6), B(7), B(8), B(9), B(0), B(1)]
    rot = [B(2), B(3), B(4)]
    sblk = {}
    for kb in range(2):
        for qb in range(6):
            d = P(qb) if kb == 0 else rot[qb % 3]
            sblk[kb * 6 + qb] = d
            for ks in range(6):
                a = B(ks) if kb == 0 else k1[ks]
                M.append(Ins(f"{M16} {v4(d)}, {v4(a)}, {Q(qb, ks)}, {'0' if ks == 0 else v4(d)}"))
    ones_t = [B(2), B(9), B(0), B(1), B(0), B(1)]
    vblk = [B(5), B(6), B(7), B(8), B(3), B(4), B(5), B(2), B(6), B(7), B(8), B(9)]
    ones_at, done_at = {}, {}

    def ones(qb):
        ones_at[qb] = len(M)
        M.append(Ins(f"{M16} {v4(ones_t[qb])}, {v4(vONE)}, {v4(P(qb))}, 0"))

    def pv(qb, db):
        done_at[qb, db] = len(M)
        M.append(Ins(f"{M16} {O4(qb, db)}, {v4(vblk[db])}, {v4(P(qb))}, {'0' if first else O4(qb, db)}"))

    def pair(p):
        for qb in range(6):
            for db in ((2 * p + 1, 2 * p) if (cfg.snake and qb % 2) else (2 * p, 2 * p + 1)):
                pv(qb, db)

    for qb in range(4):
        ones(qb)
    pair(0)
    ones(4)
    ones(5)
    pair(1)
    pair(2)
    if ovl:
        for qb in range(6):
            for db in (6, 7, 8, 11, 9, 10)[::-1 if (cfg.snake and qb % 2) else 1]:
                pv(qb, db)
    else:
        for p in range(3, 6):
            pair(p)
    n = len(M)
    g0 = 72 if first else 0
    G = [Gap() for _ in range(n)]

    if not first:
        for c in range(12):
            kb, qb = divmod(c, 6)
            s = sblk[c]
            for r in range(4):
                G[6 * c + 8 + r].valu.append(Ins(f"v_exp_f32 v{s+r}, v{s+r}"))
            for h in range(2):
                G[6 * c + 12].valu.append(Ins(f"v_cvt_pk_bf16_f32 v{P(qb)+2*kb+h}, v{s+2*h}, v{s+2*h+1}"))
        for ks, g in zip(range(6), (0, 1, 2, 3, 31, 31)):
            G[g].mem.append(kread(k1[ks], 1, ks, 0))
    vgaps = (61, 67, 73, 79, 82, 84, 91, 93, 95, 102, 104, 97) if ovl else (61, 67, 73, 79, 82, 84, 91, 93, 103, 105, 115, 117)
    for db, g in enumerate(vgaps):
        if g >= g0:
            for jj in range(2):
                G[g].mem.append(vread(vblk[db], db, jj))
    add_gaps = (80, 80, 81, 81, 96, 96)
    adds = []
    for qb, g in enumerate(add_gaps):
        adds.append(Ins(f"v_mov_b32 v{vL+qb}, v{ones_t[qb]}" if first else f"v_add_f32 v{vL+qb}, v{vL+qb}, v{ones_t[qb]}"))
        G[g].valu.append(adds[-1])
    if not last:
        for ks, g in zip(range(6), (126, 127, 128, 129, 130, 131)):
            G[g].mem.append(kread(B(ks), 0, ks, 1))

    bg = cfg.first_bar if first else cfg.bar_gap
    G[bg].sc.append(Ins(f"s_waitcnt vmcnt({vm})"))
    G[bg].post.append(Ins("s_barrier"))

    chains, fixed = [], []
    if not last:
        chains.append((76 if first else 38, [Ins(f"s_cmp_eq_u32 s{sRd}, {10*SLOT}"),
                                             Ins(f"s_cselect_b32 s{sDel}, s{sBack}, s{sFwd}"),
                                             Ins(f"s_add_u32 s{sRd}, s{sRd}, s{sDel}")]))
        G[83 if first else 49].valu.append(Ins(f"v_add_u32 v{vK}, s{sDel}, v{vK}"))
        G[121].valu.append(Ins(f"v_add_u32 v{vV}, s{sDel}, v{vV}"))
    spots = {0: [], 1: [(97, 104, 111)], 2: [(86, 92, 98), (107, 110, 113)], 3: [(86, 90, 94), (99, 104, 108), (112, 118, 122)],
             4: [(85, 88, 92), (97, 100, 104), (108, 111, 114), (119, 122, 124)]}[len(fills)]
    for (pre, ops), gs in zip(fills, spots):
        fixed.append((gs, pre))
        for g, x in zip(gs, ops):
            assert G[g].free() == 2, g
            G[g].mem.append(x)
    if loop:
        chains.append((118, [Ins(f"s_add_u32 s{sGd}, s{sGd}, 12288"),
                             Ins(f"s_cmp_eq_u32 s{sMd}, s{sMw}"),
                             Ins(f"s_cselect_b32 s{sTmp}, s{sBack}, s{sFwd}"),
                             Ins(f"s_add_u32 s{sMd}, s{sMd}, s{sTmp}")]))
        chains.append((140, [Ins(f"s_add_u32 s{sCnt}, s{sCnt}, 1"), Ins(f"s_cmp_lt_u32 s{sCnt}, {loop[1]}")]))

    def place(seq, g):
        for x in seq:
            while True:
                ok = G[g].free() >= x.vslots and not G[g].post and not any(y.kind == "vmem" for y in G[g].mem)
                if ok and x.kind == "ds" and G[g].valu:
                    ok = False
                if ok and x.kind == "valu" and any(y.kind == "trans" for y in G[g].valu):
                    ok = False
                if ok:
                    break
                g += 1
            (G[g].mem if x.kind == "ds" else G[g].valu).append(x)
        return g

    conv_first = []
    if last:
        tmp = B(0) + 1
        chk = [f"v_max3_f32 v{tmp}, v{vL}, v{vL+1}, v{vL+2}", f"v_min3_f32 v{tmp+1}, v{vL}, v{vL+1}, v{vL+2}",
               f"v_max3_f32 v{tmp}, v{tmp}, v{vL+3}, v{vL+4}", f"v_min3_f32 v{tmp+1}, v{tmp+1}, v{vL+3}, v{vL+4}",
               f"v_max_f32 v{tmp}, v{tmp}, v{vL+5}", f"v_min_f32 v{tmp+1}, v{tmp+1}, v{vL+5}",
               f"v_cmp_lt_f32 {s2(sFlag)}, s{sHi}, v{tmp}", f"v_cmp_gt_f32 {s2(sFlag2)}, s{sLo}, v{tmp+1}"]
        chk += [f"v_rcp_f32 v{vL+qb}, v{vL+qb}" for qb in range(6)]
        a1, a2 = epi_addr()
        place(a1, 37)
        g = place([Ins(x) for x in chk], 98)
        chains.append((g, [Ins(f"s_or_b64 {s2(sFlag)}, {s2(sFlag)}, {s2(sFlag2)}")]))
        g = place(a2, g + 1)
        if ovl:
            for db in (0, 1, 2, 3, 4, 5, 6, 7, 8, 11, 9, 10):
                blk = conv_block(cfg, 0, db)
                g = max(g, done_at[0, db] + 4)
                spill = False
                for x in blk:
                    if not spill:
                        try:
                            g = place([x], g)
                            continue
                        except IndexError:
                            spill, g = True, n - 1
                    G[n - 1].post.append(x)
                conv_first.append((done_at[0, db], blk[0]))

    if first:
        q = [(set(vread(vblk[db], db, jj).w), g0 - 2) for db in range(2) for jj in range(2)]
    else:
        q = [(set(kread(B(ks), 0, ks, 0).w), -20) for ks in range(6)]
    for i in range(g0, n + (0 if last else 1)):
        need = set(M[i % n].r)
        idx = max((j for j, (w, g) in enumerate(q) if w & need), default=None)
        if idx is not None:
            assert q[idx][1] < i - 1, f"read for MFMA {i} issued too late"
            vis = [j for j, (w, g) in enumerate(q) if g < i - 1]
            idx = max([idx] + [j for j in vis if q[j][1] <= i - 9])
            cnt = len(vis) - 1 - idx
            if i == 0:
                assert cnt == 0
            else:
                assert not G[i - 1].sc, f"scalar slot of gap {i-1} taken"
                G[i - 1].sc.append(Ins(f"s_waitcnt lgkmcnt({cnt})"))
            q = q[idx + 1:]
        if i < n:
            q += [(set(x.w), i) for x in G[i].mem if x.kind == "ds"]

    lo = g0
    for gs, pre in fixed:
        free = [j for j in range(lo, gs[0]) if not G[j].sc][-len(pre):]
        assert len(free) == len(pre), (gs, free)
        for j, x in zip(free, pre):
            G[j].sc.append(x)
        lo = gs[-1] + 1
    for g, chain in chains:
        span = []
        for x in chain:
            while G[g].sc:
                span.append(G[g].sc[0])
                g += 1
            G[g].sc.append(x)
            g += 1
        assert not any(y.kind == "salu" and y.op != "s_mov_b32" for y in span), "SCC chain interleaved"
    if loop:
        G[n - 1].post.append(Ins(f"s_cbranch_scc1 {loop[0]}"))

    def pad(prod, cons):
        cons_gap = next(g for g in range(prod, n) if any(x is cons for x in G[g].seq()))

        def states():
            t = 0
            for g in range(prod, cons_gap + 1):
                if g > prod:
                    t += 1
                for x in G[g].seq():
                    if x is cons:
                        return t
                    t += x.states
        for g in range(prod, cons_gap + 1):
            if states() < 8 and not G[g].sc:
                G[g].sc.append(Ins("s_nop 0"))
        for g in range(prod, cons_gap):
            while states() < 8 and G[g].sc[0].kind == "nop" and G[g].free() > G[g].sc[0].states - 1:
                G[g].sc[0] = Ins(f"s_nop {G[g].sc[0].states}")
        assert states() >= 8, (prod, cons_gap)

    if not first:
        for c in range(12):
            pad(6 * c + 5, G[6 * c + 8].valu[0])
    for qb in range(6):
        pad(ones_at[qb], adds[qb])
    for prod, cons in conv_first:
        pad(prod, cons)

    out = []
    for m, g in list(zip(M, G))[g0:]:
        out.append(m)
        out += g.seq()
    return out


def lane_addrs(a, kbase, vbase):
    a(f"v_mbcnt_lo_u32_b32 v{vT}, -1, 0")
    a(f"v_mbcnt_hi_u32_b32 v{vT}, -1, v{vT}")
    a(f"v_and_b32 v{vT1}, 3, v{vT}")
    a(f"v_mul_u32_u24 v{vK}, {RG}, v{vT1}")
    a(f"v_lshlrev_b32 v{vV}, 3, v{vT1}")
    a(f"v_bfe_u32 v{vT1}, v{vT}, 2, 2")
    a(f"v_mul_u32_u24 v{vT2}, 384, v{vT1}")
    a(f"v_add_u32 v{vK}, v{vK}, v{vT2}")
    a(f"v_mul_u32_u24 v{vT2}, {RG}, v{vT1}")
    a(f"v_add_u32 v{vV}, v{vV}, v{vT2}")
    a(f"v_lshrrev_b32 v{vT1}, 4, v{vT}")
    a(f"v_lshl_add_u32 v{vK}, v{vT1}, 4, v{vK}")
    a(f"v_mul_u32_u24 v{vT2}, 384, v{vT1}")
    a(f"v_add_u32 v{vV}, v{vV}, v{vT2}")
    a(f"v_add_u32 v{vK}, {kbase}, v{vK}")
    a(f"v_add_u32 v{vV}, {vbase}, v{vV}")


def zero_acc(a):
    for qb in range(6):
        a(f"v_mov_b32 v{vL+qb}, 0")
    for qb in range(6):
        for db in range(12):
            f, n = O(qb, db)
            for r in range(4):
                a(f"v_mov_b32 v{n+r}, 0" if f == "v" else f"v_accvgpr_write_b32 a{n+r}, 0")


def prologue(cfg):
    out = []
    vmq = []

    def a(t, **k):
        x = Ins(t, **k)
        out.append(x)
        if x.kind == "vmem":
            vmq.append(k.get("vtag"))

    def wait_for(tag):
        last = max(i for i, t in enumerate(vmq) if t == tag)
        a(f"s_waitcnt vmcnt({len(vmq) - 1 - last})")
        del vmq[:last + 1]

    a("s_cmp_ge_u32 s2, 256")
    a("s_cbranch_scc1 L_end")
    a("s_load_dwordx4 s[4:7], s[0:1], 0")
    a("s_load_dwordx4 s[8:11], s[0:1], 16")
    if cfg.stamps:
        a(f"s_load_dwordx2 {s2(sWs)}, s[0:1], 40")
        a(f"s_memrealtime {s2(sT0)}")
    a(f"s_getpc_b64 {s2(sC)}")
    a("L_pc:")
    a(f"s_and_b32 s{sC+1}, s{sC+1}, 0xffff")
    a(f"s_mov_b32 s{sC+2}, {cfg.pf_bytes if cfg.pf_bytes else 'L_slow-L_pc'}")
    a(f"s_mov_b32 s{sC+3}, 0x20000")
    a(f"v_lshlrev_b32 v{vT1}, 7, v0")
    a(f"buffer_load_dword v{vT2}, v{vT1}, {s4(sC)}, 0 offen", vtag="pf")
    a(f"v_lshrrev_b32 v{vK}, 6, v0")
    a(f"v_and_b32 v{vD}, 63, v0")
    a(f"v_readfirstlane_b32 s{sW}, v{vK}")
    a(f"v_lshlrev_b32 v{vD}, 4, v{vD}")
    a(f"s_mul_i32 s{sTmp}, s2, 147456")
    a(f"s_mul_i32 s{sTmp2}, s2, 393216")
    a(f"s_mul_i32 s{sG0}, s{sW}, 3072")
    a(f"s_mul_i32 s{sM0}, s{sW}, {RG}")
    a(f"s_mul_i32 s{sOo}, s{sW}, 36864")
    a(f"s_mov_b32 m0, s{sM0}")
    for r, n in ((sK, 393216), (sQ, 147456), (sV, 393216), (sO, 147456)):
        a(f"s_mov_b32 s{r+2}, {n}")
        a(f"s_mov_b32 s{r+3}, 0x20000")
    a("s_waitcnt lgkmcnt(0)")

    def srd(r, lo, off):
        a(f"s_add_u32 s{r}, s{lo}, s{off}")
        a(f"s_addc_u32 s{r+1}, s{lo+1}, 0")
        a(f"s_and_b32 s{r+1}, s{r+1}, 0xffff")

    srd(sK, 6, sTmp2)
    for p in range(3):
        a(f"buffer_load_dwordx4 v{vD}, {s4(sK)}, s{sG0} offen offset:{p*1024}{cfg.ldpol} lds",
          fill=("K", 0, p, lambda t: 0), vtag="K0")
    srd(sQ, 4, sTmp)

    def q_region(j):
        pre = [Ins(f"s_add_u32 s{sTmp}, s{sOo}, {j*3072}", sets=("Q", j)), Ins(f"s_add_u32 m0, s{sM0}, {(j+1)*SLOT}", sets=("Q", j))]
        ops = [Ins(f"buffer_load_dwordx4 v{vD}, {s4(sQ)}, s{sTmp} offen offset:{p*1024}{cfg.ldpol} lds",
                   fill=("Q", j, p, lambda t, j=j: j + 1), vtag=("Q", j // 2), uses=((f"s{sTmp}", ("Q", j)), ("m0", ("Q", j))))
               for p in range(3)]
        return pre, ops

    srd(sV, 8, sTmp2)
    srd(sO, 10, sTmp)
    pending = [q_region(j) for j in range(12)] + [static_fill(cfg, s) for s in range(1, cfg.pro_last + 1)]
    stream = []
    for pre, ops in pending:
        stream += [pre + [Ins("s_nop 0"), ops[0]], [ops[1]], [ops[2]]]

    def issue(k):
        for _ in range(min(k, len(stream))):
            for x in stream.pop(0):
                a(x.text, **x.tags)

    issue(3 * cfg.win)
    npeel = len(cfg.ramp)
    a(f"s_mov_b32 s{sScale}, {f32(math.log2(math.e) / math.sqrt(192.0))}")
    a(f"s_mov_b32 s{sMask}, 0xffff0000")
    a(f"s_mov_b32 s{sHi}, {f32(cfg.hi)}")
    a(f"s_mov_b32 s{sLo}, {f32(cfg.lo)}")
    a(f"s_mov_b32 s{sFwd}, {2*SLOT}")
    a(f"s_mov_b32 s{sBack}, {(-10*SLOT) & 0xffffffff:#x}")
    a(f"s_add_u32 s{sMw}, s{sM0}, {10*SLOT}")
    a(f"s_add_u32 s{sMd}, s{sM0}, {2*((npeel + cfg.L) % 6)*SLOT}")
    a(f"s_add_u32 s{sGd}, s{sG0}, {(npeel + cfg.L)*12288}")
    a(f"s_mul_i32 s{sPriv}, s{sW}, {PRIVSZ}")
    a(f"s_add_u32 s{sPriv}, s{sPriv}, {PRIV0}")
    a(f"s_mov_b32 s{sRd}, 0")
    a(f"s_mov_b32 s{sCnt}, {npeel}")
    a(f"s_mov_b32 s{sTmp2}, 384")
    wait_for("pf")
    lane_addrs(a, 0, SLOT)
    a(f"v_bfe_u32 v{vT1}, v{vT}, 3, 1")
    a(f"v_mul_u32_u24 v{vT1}, {SLOT}, v{vT1}")
    a(f"v_and_b32 v{vT2}, 7, v{vT}")
    a(f"v_mul_u32_u24 v{vT2}, 384, v{vT2}")
    a(f"v_add_u32 v{vT1}, v{vT1}, v{vT2}")
    a(f"v_lshrrev_b32 v{vT2}, 4, v{vT}")
    a(f"v_lshl_add_u32 v{vT1}, v{vT2}, 4, v{vT1}")
    a(f"s_add_u32 s{sDel}, s{sM0}, {SLOT}")
    a(f"v_add_u32 v{vT}, s{sDel}, v{vT1}")
    for r in range(4):
        a(f"v_mov_b32 v{vONE+r}, 0x3f803f80")
    kf, qs, ct, s1 = vO, vO + 48, vO + 72, vO + 80
    wait_for("K0")
    a("s_barrier")
    for i in range(12):
        out.append(kread(kf + 4 * i, i // 6, i % 6, 0))
    for qb in range(6):
        if cfg.probe and qb == cfg.probe - 1:
            a(f"s_memrealtime {s2(sC0)}")
        wait_for(("Q", qb))
        if cfg.probe and qb == cfg.probe - 1:
            a(f"s_memrealtime {s2(sT1)}")
            a("s_waitcnt lgkmcnt(0)")
        if qb == 0:
            a("s_waitcnt lgkmcnt(0)")
        for ks in range(6):
            a(f"ds_read_b128 {v4(qs + 4*ks)}, v{vT} offset:{ks*64}", need=("Q", 2 * qb), own=True)
        if qb < 5:
            a(f"v_add_u32 v{vT}, {2*SLOT}, v{vT}")
        for ks in range(6):
            a(f"s_waitcnt lgkmcnt({5 - ks})")
            issue(1)
            for j in range(4):
                src, t = qs + 4 * ks + j, ct + 2 * j
                a(f"v_lshlrev_b32 v{t}, 16, v{src}")
                a(f"v_and_b32 v{t+1}, s{sMask}, v{src}")
                a(f"v_mul_f32 v{t}, s{sScale}, v{t}")
                a(f"v_mul_f32 v{t+1}, s{sScale}, v{t+1}")
                if ks and j < 2:
                    d = P(qb) if j == 0 else s1
                    a(f"{M16} {v4(d)}, {v4(kf + 24*j + 4*(ks-1))}, {Q(qb, ks-1)}, {'0' if ks == 1 else v4(d)}")
            for j in range(4):
                a(f"v_cvt_pk_bf16_f32 v{ct+2*j}, v{ct+2*j}, v{ct+2*j+1}")
            for j in range(4):
                a(f"v_accvgpr_write_b32 a{qb*24+4*ks+j}, v{ct+2*j}")
        a("s_nop 1")
        for j in range(2):
            d = P(qb) if j == 0 else s1
            a(f"{M16} {v4(d)}, {v4(kf + 24*j + 20)}, {Q(qb, 5)}, {v4(d)}")
        a("s_nop 6")
        for d in (P(qb), s1):
            for r in range(4):
                a(f"v_exp_f32 v{d+r}, v{d+r}")
        for h in range(2):
            a(f"v_cvt_pk_bf16_f32 v{P(qb)+h}, v{P(qb)+2*h}, v{P(qb)+2*h+1}")
        for h in range(2):
            a(f"v_cvt_pk_bf16_f32 v{P(qb)+2+h}, v{s1+2*h}, v{s1+2*h+1}")
        if cfg.probe and qb == cfg.probe - 1:
            a(f"s_memrealtime {s2(sT2)}")
            a("s_waitcnt lgkmcnt(0)")
    issue(99)
    if cfg.stamps and not cfg.probe:
        a(f"s_memrealtime {s2(sT1)}")
        a(f"s_memtime {s2(sC0)}")
        a("s_waitcnt lgkmcnt(0)")
    wait_for(("S", 1))
    a("s_barrier")
    if cfg.probe:
        a(f"s_memrealtime {s2(sT3)}")
        a("s_waitcnt lgkmcnt(0)")
    for db, blk in ((0, B(5)), (1, B(6))):
        for jj in range(2):
            out.append(vread(blk, db, jj))
    return out


def epilogue(cfg):
    out = []

    def a(t, **k):
        out.append(Ins(t, **k))

    def conv(qb, dbs):
        for db in dbs:
            out.extend(conv_block(cfg, qb, db, cfg.pkmul))

    def rb(qb):
        return vP if qb % 2 == 0 else vB

    def reads(qb):
        buf = (qb % 4) * 16 * STG
        for i in range(6):
            h, t = divmod(i, 3)
            a(f"ds_read_b128 {v4(rb(qb) + 4*i)}, v{vV} offset:{buf + h*8*STG + 128*t}")

    def stores(qb):
        for i in range(6):
            h, t = divmod(i, 3)
            a(f"buffer_store_dwordx4 {v4(rb(qb) + 4*i)}, v{vT}, {s4(sO)}, s{sOo} offen offset:{h*3072 + 128*t}{cfg.stpol}")
        if qb < 5:
            a(f"s_add_u32 s{sOo}, s{sOo}, 6144")

    if not cfg.overlap_epi:
        conv(0, range(12))
    for qb in range(6):
        a("s_waitcnt lgkmcnt(0)")
        reads(qb)
        if qb < 5:
            conv(qb + 1, range(0, 3))
            a("s_waitcnt lgkmcnt(3)")
        else:
            a("s_waitcnt lgkmcnt(0)")
        stores(qb)
        if qb < 5:
            conv(qb + 1, range(3, 12))
    return out


def slow_path(cfg):
    parts = []
    out = []

    def a(t, **k):
        out.append(Ins(t, **k))

    def cut():
        parts.append(list(out))
        out.clear()

    m = [B(9), B(9) + 1, B(9) + 2, B(9) + 3, vT1, vT2]
    S = B(6)

    def load(srd, base):
        for rg in range(4):
            a(f"s_add_u32 m0, s{sPriv}, {base + rg*RG}")
            a(f"s_add_u32 s{sTmp}, s{sGd}, {rg*3072}")
            for p in range(3):
                a(f"buffer_load_dwordx4 v{vD}, {s4(srd)}, s{sTmp} offen offset:{p*1024} lds")

    def kfrags(kb):
        for ks in range(6):
            a(f"ds_read_b128 {v4(B(ks))}, v{vK} offset:{kb*1536 + ks*64}")
        a("s_waitcnt lgkmcnt(0)")

    def chain(qb):
        for ks in range(6):
            a(f"{M16} {v4(S)}, {v4(B(ks))}, {Q(qb, ks)}, {'0' if ks == 0 else v4(S)}")
        a("s_nop 7")

    a("L_slow:")
    a("s_waitcnt lgkmcnt(0)")
    a("s_nop 7")
    a(f"s_add_u32 s{sDel}, s{sPriv}, {4*RG}")
    lane_addrs(a, f"s{sPriv}", f"s{sDel}")
    a(f"v_xor_b32 v{vP}, 16, v{vT}")
    a(f"v_lshlrev_b32 v{vP}, 2, v{vP}")
    a(f"v_xor_b32 v{vP+1}, 32, v{vT}")
    a(f"v_lshlrev_b32 v{vP+1}, 2, v{vP+1}")
    for qb in range(6):
        a(f"v_mov_b32 v{m[qb]}, 0xff800000")
    a(f"s_mov_b32 s{sGd}, 0")
    cut()
    a("L_slow_max:")
    load(sK, 0)
    a("s_waitcnt vmcnt(0)")
    for kb in range(2):
        kfrags(kb)
        for qb in range(6):
            chain(qb)
            a(f"v_max3_f32 v{m[qb]}, v{m[qb]}, v{S}, v{S+1}")
            a(f"v_max3_f32 v{m[qb]}, v{m[qb]}, v{S+2}, v{S+3}")
    a(f"s_add_u32 s{sGd}, s{sGd}, 12288")
    a(f"s_cmp_lt_u32 s{sGd}, 393216")
    a("s_cbranch_scc1 L_slow_max")
    cut()
    for x in range(2):
        for qb in range(6):
            a(f"ds_bpermute_b32 v{vP+4+qb}, v{vP+x}, v{m[qb]}")
        a("s_waitcnt lgkmcnt(0)")
        for qb in range(6):
            a(f"v_max_f32 v{m[qb]}, v{m[qb]}, v{vP+4+qb}")
    zero_acc(a)
    a(f"s_mov_b32 s{sGd}, 0")
    cut()
    a("L_slow_main:")
    load(sK, 0)
    load(sV, 4 * RG)
    a("s_waitcnt vmcnt(0)")
    for kb in range(2):
        kfrags(kb)
        for qb in range(6):
            chain(qb)
            for r in range(4):
                a(f"v_sub_f32 v{S+r}, v{S+r}, v{m[qb]}")
            for r in range(4):
                a(f"v_exp_f32 v{S+r}, v{S+r}")
            a("s_nop 0")
            for h in range(2):
                a(f"v_cvt_pk_bf16_f32 v{P(qb)+2*kb+h}, v{S+2*h}, v{S+2*h+1}")
    a("s_nop 1")
    for qb in range(6):
        a(f"{M16} {v4(S)}, {v4(vONE)}, {v4(P(qb))}, 0")
        a("s_nop 7")
        a(f"v_add_f32 v{vL+qb}, v{vL+qb}, v{S}")
    for db in range(12):
        t = B(7 + db % 2)
        for jj in range(2):
            a(f"ds_read_b64_tr_b16 {v2(t + 2*jj)}, v{vV} offset:{jj*1536 + db*32}")
        a("s_waitcnt lgkmcnt(0)")
        for qb in range(6):
            a(f"{M16} {O4(qb, db)}, {v4(t)}, {v4(P(qb))}, {O4(qb, db)}")
    a(f"s_add_u32 s{sGd}, s{sGd}, 12288")
    a(f"s_cmp_lt_u32 s{sGd}, 393216")
    a("s_cbranch_scc1 L_slow_main")
    cut()
    for qb in range(6):
        a(f"v_rcp_f32 v{vL+qb}, v{vL+qb}")
    a1, a2 = epi_addr()
    out.extend(a1 + a2)
    if cfg.overlap_epi:
        for db in range(12):
            out.extend(conv_block(cfg, 0, db))
    a("s_branch L_epi")
    cut()
    return parts


def build(cfg):
    L, npeel = cfg.L, len(cfg.ramp)
    assert cfg.ramp[-1] == 2 * (npeel - 1) + 2 * L + 1
    pro = prologue(cfg)
    issued = cfg.pro_last
    head = []
    for t, upto in enumerate(cfg.ramp):
        fills = [static_fill(cfg, s) for s in range(issued + 1, upto + 1)]
        if t == 0:
            probe = tile(cfg, "first", fills, 0)
            before = sum(1 for x in probe[:next(i for i, x in enumerate(probe) if x.kind == "barrier")] if x.kind == "vmem")
            head.append(tile(cfg, "first", fills, 3 * (issued - 2) + before))
        else:
            head.append(tile(cfg, "mid", fills, 3 * (issued - (2 * t + 2))))
        issued = upto
    body = tile(cfg, "mid", [dyn_fill(cfg, 0), dyn_fill(cfg, 1)], 3 * (2 * L - 3), loop=("L_loop", NT - L))
    tails = [tile(cfg, "last" if t == NT - 1 else "mid", [], 3 * max(0, 63 - (2 * t + 2))) for t in range(NT - L, NT)]
    mid = []
    if cfg.stamps and not cfg.probe:
        mid += [Ins("s_waitcnt lgkmcnt(0)"), Ins(f"s_memrealtime {s2(sT2)}"), Ins(f"s_memtime {s2(sC1)}"), Ins("s_waitcnt lgkmcnt(0)")]
    if cfg.force_slow:
        mid += [Ins("s_branch L_slow")]
    else:
        mid += [Ins(f"s_cmp_lg_u64 {s2(sFlag)}, 0"), Ins("s_cbranch_scc1 L_slow")]
    epi = [Ins("L_epi:")] + epilogue(cfg)
    fin = []
    if cfg.stamps:
        fin = [Ins(x) for x in (
            "s_waitcnt vmcnt(0)", "s_nop 0" if cfg.probe else f"s_memrealtime {s2(sT3)}", "s_waitcnt lgkmcnt(0)",
            f"s_and_b32 s{sWs+1}, s{sWs+1}, 0xffff", f"s_mov_b32 s{sWs+2}, 402653184", f"s_mov_b32 s{sWs+3}, 0x20000",
            f"s_lshl_b32 s{sTmp}, s2, 2", f"s_add_u32 s{sTmp}, s{sTmp}, s{sW}", f"s_lshl_b32 s{sTmp}, s{sTmp}, 5",
            f"s_mov_b32 s{sC1}, s{sC0}" if cfg.probe else f"s_sub_u32 s{sC1}, s{sC1}, s{sC0}",
            f"v_mov_b32 v16, s{sT0}", f"v_mov_b32 v17, s{sT1}", f"v_mov_b32 v18, s{sT2}", f"v_mov_b32 v19, s{sT3}",
            f"v_mov_b32 v20, s{sC1}", "v_mov_b32 v21, 0", "s_mov_b64 exec, 1",
            f"buffer_store_dwordx4 v[16:19], v21, {s4(sWs)}, s{sTmp} offen",
            f"buffer_store_dword v20, v21, {s4(sWs)}, s{sTmp} offen offset:16")]
    if cfg.diag_until:
        fin = [Ins(x) for x in ("s_waitcnt vmcnt(0)", "L_diag:", f"s_memrealtime {s2(sT3)}", "s_waitcnt lgkmcnt(0)",
                                f"s_sub_u32 s{sTmp}, s{sT3}, s{sT0}", f"s_cmp_lt_u32 s{sTmp}, {cfg.diag_until}", "s_cbranch_scc1 L_diag")]
    end = [Ins("L_end:"), Ins("s_endpgm")]
    slow = slow_path(cfg)

    trace = []
    for x in pro:
        trace.append((x, 0))
        if x.kind == "ds" and x.tags.get("need", ("",))[0] == "Q" and "offset:0" in x.text:
            trace.append((Ins("", ghost_need=("Q", x.tags["need"][1] + 1)), 0))
    for t, tl in enumerate(head):
        trace += [(x, t) for x in tl]
    for t in range(npeel, NT - L):
        trace += [(x, t) for x in body]
    for i, tl in enumerate(tails):
        trace += [(x, NT - L + i) for x in tl]
    errs = verify(trace + [(x, 0) for x in mid + epi + fin], "fast")
    errs += verify(trace + [(x, 0) for x in mid + slow[0] + slow[1] * 2 + slow[2] + slow[3] * 2 + slow[4] + epi + fin], "slow")
    rep = [gap_report(x) for x in head + [body] + tails]
    text = []
    flat = lambda xs: [y for x in xs for y in x]
    for x in pro + flat(head) + [Ins(".p2align 6"), Ins("L_loop:")] + body + flat(tails) + mid + epi + fin + end + flat(slow):
        if x.text:
            text.append(x.text if x.is_label else "    " + x.text)
    asm = HEADER.format(grid=256, block=256, lds=163840) + "\n".join(text) + "\n" + \
        FOOTER.format(nvgpr=512, nsgpr=102, accum=256, extra="")
    return asm, errs, rep


if __name__ == "__main__":
    cfg = Cfg()
    outp = sys.argv[1]
    for kv in sys.argv[2:]:
        k, v = kv.split("=", 1)
        old = getattr(cfg, k)
        setattr(cfg, k, (" " + v if v else "") if isinstance(old, str) else (eval(v) if isinstance(old, tuple) else type(old)(eval(v))))
    asm, errs, rep = build(cfg)
    for e in errs[:30]:
        print("HAZARD", e)
    print(f"{outp}: {len(errs)} hazards; tile model cycles {[r[0] for r in rep]}; over-full {[r[1] for r in rep if r[1]]}")
    open(outp, "w").write(asm)
```

```python
import math
import struct
import sys

from asmlib import Ins, verify, gap_report
from common import HEADER, FOOTER

M16 = "v_mfma_f32_16x16x32_bf16"
NT = 32
SLOT = 12576
RG = 3104
PRIV0, PRIVSZ = 100608, 15808
QSLOT = (5, 7, 9, 11, 0, 2)
STG = 400
TRS, TU, TBUF = 160, 2560, 7680

vT, vK, vV, vD = 0, 1, 2, 3
vL = 4
vT1, vT2 = 10, 11
vONE, vP, vB, vO = 12, 16, 40, 80
sW = 3
sQ, sK, sV, sO, sC = 12, 16, 20, 24, 28
sScale, sMask, sG0, sM0, sCnt, sDel, sRd, sTmp, sTmp2 = 32, 33, 34, 35, 36, 37, 38, 39, 40
sHi, sLo, sFwd, sBack, sMw, sPriv, sGd = 41, 42, 43, 44, 45, 46, 47
sFlag, sFlag2, sMd, sOo, sUnit, sFlag3 = 48, 50, 52, 53, 54, 70
sOq = 72
sT0, sT1, sT2, sT3, sC0, sC1, sWs = 56, 58, 60, 62, 64, 66, 68


def f32(x):
    return "0x%08x" % struct.unpack("<I", struct.pack("<f", x))[0]


def v4(n): return f"v[{n}:{n+3}]"
def v2(n): return f"v[{n}:{n+1}]"
def s4(n): return f"s[{n}:{n+3}]"
def s2(n): return f"s[{n}:{n+1}]"
def P(qb): return vP + 4 * qb
def B(i): return vB + 4 * i
def Q(qb, ks): return f"a[{qb*24+ks*4}:{qb*24+ks*4+3}]"


_O_AGPR = [(qb, db) for qb in (5, 4, 3) for db in range(12)][:28]
_O_VGPR = [(qb, db) for qb in range(6) for db in range(12) if (qb, db) not in _O_AGPR]


MOVED = {}


def O(qb, db):
    if (qb, db) in MOVED:
        return ("v", MOVED[qb, db])
    if (qb, db) in _O_AGPR:
        return ("a", 144 + 4 * _O_AGPR.index((qb, db)))
    return ("v", vO + 4 * _O_VGPR.index((qb, db)))


def O4(qb, db):
    f, n = O(qb, db)
    return f"{f}[{n}:{n+3}]"


def pair_of(t):
    return (t + 2) % 6


class Cfg:
    ldpol = " nt"
    stpol = " nt"
    stamps = False
    bar_gap = 55
    pf_bytes = 0
    hi = 2.0 ** 36
    lo = 2.0 ** -24
    force_slow = False
    diag_until = 0
    pro_last = 3
    ramp = (5, 8, 11)
    L = 3
    snake = True
    overlap_epi = True
    pkmul = False
    first_bar = 120
    probe = 0
    cinit = ' -4.0'
    swap = True
    ntail = 4
    extra = (2, 1, 0, 0)
    migrate = False
    mig_extra = 0
    pk_tail = True
    lat = 6
    st_room = 1
    st_gap = 1
    wr_wait = True
    bias = 0
    x_obias = ' 0'
    win = 3


def cinit(cfg):
    return v4(vONE) if cfg.bias else cfg.cinit.strip()


def unit(cfg):
    return float(cfg.bias) if cfg.bias else 1.0


def unit_bits(cfg):
    h = struct.unpack("<I", struct.pack("<f", unit(cfg)))[0] >> 16
    return h << 16 | h


def kread(dst, kb, ks, rel):
    return Ins(f"ds_read_b128 {v4(dst)}, v{vK} offset:{kb*1536 + ks*64}", need=("K", rel))


def vread(dst, db, jj):
    return Ins(f"ds_read_b64_tr_b16 {v2(dst + 2*jj)}, v{vV} offset:{jj*1536 + db*32}", need=("V", 0))


def static_fill(cfg, seq):
    t, isv = divmod(seq, 2)
    slot = 2 * pair_of(t) + isv
    pre = [Ins(f"s_add_u32 s{sTmp}, s{sG0}, {t*12288}", sets=seq), Ins(f"s_add_u32 m0, s{sM0}, {slot*SLOT}", sets=seq)]
    ops = [Ins(f"buffer_load_dwordx4 v{vD}, {s4(sV if isv else sK)}, s{sTmp} offen offset:{p*1024}{cfg.ldpol} lds",
               fill=("V" if isv else "K", t, p, lambda tt, slot=slot: slot), abs_fill=True, vtag=("S", seq),
               uses=((f"s{sTmp}", seq), ("m0", seq))) for p in range(3)]
    return pre, ops


def dyn_fill(cfg, isv):
    pre = [Ins(f"s_add_u32 m0, s{sMd}, {SLOT}" if isv else f"s_mov_b32 m0, s{sMd}", sets=("dyn", isv))]
    ops = [Ins(f"buffer_load_dwordx4 v{vD}, {s4(sV if isv else sK)}, s{sGd} offen offset:{p*1024}{cfg.ldpol} lds",
               fill=("V" if isv else "K", cfg.L, p, lambda tt: 2 * pair_of(tt + cfg.L) + isv),
               uses=(("m0", ("dyn", isv)),)) for p in range(3)]
    return pre, ops


class Gap:
    def __init__(self):
        self.sc, self.mem, self.valu, self.post = [], [], [], []

    def free(self):
        return 2 - sum(x.vslots for x in self.mem + self.valu) - len(self.post)

    def seq(self):
        return self.sc + self.mem + self.valu + self.post


def epi_addr():
    first = [f"v_mbcnt_lo_u32_b32 v{vT1}, -1, 0", f"v_mbcnt_hi_u32_b32 v{vT1}, -1, v{vT1}",
             f"v_and_b32 v{vT2}, 15, v{vT1}", f"v_mul_u32_u24 v{vK}, {STG}, v{vT2}",
             f"v_lshrrev_b32 v{vT2}, 4, v{vT1}", f"v_lshl_add_u32 v{vK}, v{vT2}, 3, v{vK}", f"v_add_u32 v{vK}, s{sPriv}, v{vK}",
             f"v_lshrrev_b32 v{vT2}, 3, v{vT1}", f"v_and_b32 v{vT1}, 7, v{vT1}", f"v_lshlrev_b32 v{vT1}, 4, v{vT1}",
             f"v_mad_u32_u24 v{vT}, v{vT2}, s{sTmp2}, v{vT1}", f"v_lshlrev_b32 v{vT2}, 4, v{vT2}", f"v_add_u32 v{vT2}, v{vT2}, v{vT}"]
    second = [f"v_add_u32 v{vV}, s{sPriv}, v{vT2}"]
    return [Ins(x) for x in first], [Ins(x) for x in second]


def epi_addr_swap():
    t = vT2
    first = [f"v_mbcnt_lo_u32_b32 v{vT1}, -1, 0", f"v_mbcnt_hi_u32_b32 v{vT1}, -1, v{vT1}",
             f"v_bfe_u32 v{t}, v{vT1}, 4, 1", f"v_lshrrev_b32 v{vK}, 5, v{vT1}", f"v_lshl_add_u32 v{t}, v{t}, 1, v{vK}",
             f"v_bfe_u32 v{vK}, v{vT1}, 3, 1", f"v_lshl_add_u32 v{vK}, v{t}, 1, v{vK}", f"v_mul_u32_u24 v{vT}, 384, v{vK}",
             f"v_and_b32 v{vK}, 3, v{vT1}", f"v_lshl_add_u32 v{vT}, v{vK}, 5, v{vT}",
             f"v_bfe_u32 v{vK}, v{vT1}, 2, 1", f"v_lshl_add_u32 v{vT}, v{vK}, 4, v{vT}",
             f"v_bfe_u32 v{vK}, v{vT1}, 1, 1", f"v_lshl_add_u32 v{t}, v{t}, 1, v{vK}", f"v_mul_u32_u24 v{t}, {TRS}, v{t}",
             f"v_and_b32 v{vK}, 1, v{vT1}", f"v_lshl_add_u32 v{t}, v{vK}, 6, v{t}",
             f"v_bfe_u32 v{vK}, v{vT1}, 2, 2", f"v_lshl_add_u32 v{t}, v{vK}, 3, v{t}",
             f"v_and_b32 v{vK}, 15, v{vT1}", f"v_lshlrev_b32 v{vK}, 3, v{vK}", f"v_and_b32 v{vT1}, 48, v{vT1}",
             f"v_mad_u32_u24 v{vK}, v{vT1}, {4 * TRS // 16}, v{vK}", f"v_add_u32 v{vK}, s{sPriv}, v{vK}"]
    second = [f"v_add_u32 v{vV}, s{sPriv}, v{t}"]
    return [Ins(x) for x in first], [Ins(x) for x in second]


def inv_regs(qb):
    return B(1) if qb % 2 == 0 else B(0)


def bperm(qb):
    return [Ins(f"ds_bpermute_b32 v{inv_regs(qb)+r}, v{vT1}, v{vL+qb} offset:{4*r}") for r in range(4)]


def conv_half(qb, u, rh):
    res, x = [], []
    for j in range(4):
        f, n = O(qb, 4 * u + j)
        if f == "a":
            t = B(2) + 4 * j
            res += [f"v_accvgpr_read_b32 v{t+r}, a{n+r}" for r in (2 * rh, 2 * rh + 1)]
            n = t
        x.append(n + 2 * rh)
    inv = inv_regs(qb) + 2 * rh
    res += [f"v_mul_f32 v{x[j]+r}, v{inv+r}, v{x[j]+r}" for j in range(4) for r in range(2)]
    res += [f"v_cvt_pk_bf16_f32 v{x[0]}, v{x[0]}, v{x[1]}", f"v_cvt_pk_bf16_f32 v{x[1]}, v{x[0]+1}, v{x[1]+1}",
            f"v_cvt_pk_bf16_f32 v{x[0]+1}, v{x[2]}, v{x[3]}", f"v_cvt_pk_bf16_f32 v{x[1]+1}, v{x[2]+1}, v{x[3]+1}"]
    res += [f"ds_write_b64 v{vK}, {v2(x[r])} offset:{(qb % 3)*TBUF + u*TU + (2*rh + r)*TRS}" for r in range(2)]
    return [Ins(y) for y in res]


def conv_block(cfg, qb, db, pk=False):
    res = []
    f, n = O(qb, db)
    if f == "a":
        t = vB + 24 + 4 * (db % 4)
        res += [f"v_accvgpr_read_b32 v{t+r}, a{n+r}" for r in range(4)]
        n = t
    if pk:
        sel = "op_sel:[1,0] op_sel_hi:[1,1]" if qb % 2 else "op_sel:[0,0] op_sel_hi:[0,1]"
        res += [f"v_pk_mul_f32 {v2(n+r)}, {v2(vL + (qb & ~1))}, {v2(n+r)} {sel}" for r in (0, 2)]
    else:
        res += [f"v_mul_f32 v{n+r}, v{vL+qb}, v{n+r}" for r in range(4)]
    res += [f"v_cvt_pk_bf16_f32 v{n}, v{n}, v{n+1}", f"v_cvt_pk_bf16_f32 v{n+1}, v{n+2}, v{n+3}",
            f"ds_write_b64 v{vK}, {v2(n)} offset:{(qb % 4) * 16 * STG + 32*db}"]
    return [Ins(x) for x in res]


def tile(cfg, kind, fills, vm, loop=None):
    first, last = kind == "first", kind == "last"
    ovl = last and cfg.overlap_epi
    M = []
    k1 = [B(6), B(7), B(8), B(9), B(0), B(1)]
    rot = [B(2), B(3), B(4)]
    sblk = {}
    for kb in range(2):
        for qb in range(6):
            d = P(qb) if kb == 0 else rot[qb % 3]
            sblk[kb * 6 + qb] = d
            for ks in range(6):
                a = B(ks) if kb == 0 else k1[ks]
                M.append(Ins(f"{M16} {v4(d)}, {v4(a)}, {Q(qb, ks)}, {cinit(cfg) if ks == 0 else v4(d)}"))
    ones_t = [B(2), B(9), B(0), B(1), B(0), B(1)]
    vblk = [B(5), B(6), B(7), B(8), B(3), B(4), B(5), B(2), B(6), B(7), B(8), B(9)]
    ones_at, done_at = {}, {}

    def ones(qb):
        ones_at[qb] = len(M)
        M.append(Ins(f"{M16} {v4(ones_t[qb])}, {v4(vONE)}, {v4(P(qb))}, 0"))

    def pv(qb, db):
        done_at[qb, db] = len(M)
        x, y = v4(vblk[db]), v4(P(qb))
        if cfg.swap:
            x, y = y, x
        M.append(Ins(f"{M16} {O4(qb, db)}, {x}, {y}, {cfg.x_obias.strip() if first else O4(qb, db)}"))

    def pair(p):
        for qb in range(6):
            for db in ((2 * p + 1, 2 * p) if (cfg.snake and qb % 2) else (2 * p, 2 * p + 1)):
                pv(qb, db)

    for qb in range(4):
        ones(qb)
    pair(0)
    ones(4)
    ones(5)
    pair(1)
    pair(2)
    if ovl:
        for qb in range(6):
            for db in (6, 7, 8, 11, 9, 10)[::-1 if (cfg.snake and qb % 2) else 1]:
                pv(qb, db)
    else:
        for p in range(3, 6):
            pair(p)
    n = len(M)
    g0 = 72 if first else 0
    G = [Gap() for _ in range(n)]

    if not first:
        for c in range(12):
            kb, qb = divmod(c, 6)
            s = sblk[c]
            for r in range(4):
                G[6 * c + 8 + r].valu.append(Ins(f"v_exp_f32 v{s+r}, v{s+r}"))
            for h in range(2):
                G[6 * c + 12].valu.append(Ins(f"v_cvt_pk_bf16_f32 v{P(qb)+2*kb+h}, v{s+2*h}, v{s+2*h+1}"))
        for ks, g in zip(range(6), (0, 1, 2, 3, 31, 31)):
            G[g].mem.append(kread(k1[ks], 1, ks, 0))
    vgaps = (61, 67, 73, 79, 82, 84, 91, 93, 95, 102, 104, 97) if ovl else (61, 67, 73, 79, 82, 84, 91, 93, 103, 105, 115, 117)
    for db, g in enumerate(vgaps):
        if g >= g0:
            for jj in range(2):
                G[g].mem.append(vread(vblk[db], db, jj))
    add_gaps = (80, 80, 81, 81, 96, 96)
    adds = []
    for qb, g in enumerate(add_gaps):
        adds.append(Ins(f"v_mov_b32 v{vL+qb}, v{ones_t[qb]}" if first else f"v_add_f32 v{vL+qb}, v{vL+qb}, v{ones_t[qb]}"))
        G[g].valu.append(adds[-1])
    if not last:
        for ks, g in zip(range(6), (126, 127, 128, 129, 130, 131)):
            G[g].mem.append(kread(B(ks), 0, ks, 1))

    bg = cfg.first_bar if first else cfg.bar_gap
    G[bg].sc.append(Ins(f"s_waitcnt vmcnt({vm})"))
    G[bg].post.append(Ins("s_barrier"))

    chains, fixed = [], []
    if not last:
        chains.append((76 if first else 38, [Ins(f"s_cmp_eq_u32 s{sRd}, {10*SLOT}"),
                                             Ins(f"s_cselect_b32 s{sDel}, s{sBack}, s{sFwd}"),
                                             Ins(f"s_add_u32 s{sRd}, s{sRd}, s{sDel}")]))
        G[83 if first else 49].valu.append(Ins(f"v_add_u32 v{vK}, s{sDel}, v{vK}"))
        G[121].valu.append(Ins(f"v_add_u32 v{vV}, s{sDel}, v{vV}"))
    spots = {0: [], 1: [(97, 104, 111)], 2: [(86, 92, 98), (107, 110, 113)], 3: [(86, 90, 94), (99, 104, 108), (112, 118, 122)],
             4: [(85, 88, 92), (97, 100, 104), (108, 111, 114), (119, 122, 124)]}[len(fills)]
    for (pre, ops), gs in zip(fills, spots):
        fixed.append((gs, pre))
        for g, x in zip(gs, ops):
            assert G[g].free() == 2, g
            G[g].mem.append(x)
    if loop:
        chains.append((118, [Ins(f"s_add_u32 s{sGd}, s{sGd}, 12288"),
                             Ins(f"s_cmp_eq_u32 s{sMd}, s{sMw}"),
                             Ins(f"s_cselect_b32 s{sTmp}, s{sBack}, s{sFwd}"),
                             Ins(f"s_add_u32 s{sMd}, s{sMd}, s{sTmp}")]))
        chains.append((140, [Ins(f"s_add_u32 s{sCnt}, s{sCnt}, 1"), Ins(f"s_cmp_lt_u32 s{sCnt}, {loop[1]}")]))

    def place(seq, g):
        for x in seq:
            while True:
                ok = G[g].free() >= x.vslots and not G[g].post and not any(y.kind == "vmem" for y in G[g].mem)
                if ok and x.kind == "ds" and G[g].valu:
                    ok = False
                if ok and x.kind == "valu" and any(y.kind == "trans" for y in G[g].valu):
                    ok = False
                if ok:
                    break
                g += 1
            (G[g].mem if x.kind == "ds" else G[g].valu).append(x)
        return g

    conv_first = []
    if last:
        tmp = B(0) + 1
        chk = [f"v_mul_f32 v{vL+qb}, s{sUnit}, v{vL+qb}" for qb in range(6) if cfg.bias]
        chk += [f"v_max3_f32 v{tmp}, v{vL}, v{vL+1}, v{vL+2}", f"v_min3_f32 v{tmp+1}, v{vL}, v{vL+1}, v{vL+2}",
                f"v_max3_f32 v{tmp}, v{tmp}, v{vL+3}, v{vL+4}", f"v_min3_f32 v{tmp+1}, v{tmp+1}, v{vL+3}, v{vL+4}",
                f"v_max_f32 v{tmp}, v{tmp}, v{vL+5}", f"v_min_f32 v{tmp+1}, v{tmp+1}, v{vL+5}",
                f"v_cmp_lt_f32 {s2(sFlag)}, s{sHi}, v{tmp}", f"v_cmp_gt_f32 {s2(sFlag2)}, s{sLo}, v{tmp+1}"]
        rcp = [Ins(f"v_rcp_f32 v{vL+qb}, v{vL+qb}") for qb in range(6)]
        a1, a2 = epi_addr_swap() if cfg.swap else epi_addr()
        place(a1, 37)
        g = place([Ins(x) for x in chk] + rcp[:1], 98)
        chains.append((g + 1, [Ins(f"s_or_b64 {s2(sFlag)}, {s2(sFlag)}, {s2(sFlag2)}")]))
        if cfg.swap and ovl:
            g = place(bperm(0), g + 1)
        g = place(rcp[1:], g + 1)
        g = place(a2, max(g + 1, max(vgaps) + 1))
        if ovl:
            if cfg.swap:
                units = [(max(done_at[0, 4 * u + j] for j in range(4)), conv_half(0, u, rh)) for u in range(3) for rh in range(2)]
            else:
                units = [(done_at[0, db], conv_block(cfg, 0, db)) for db in (0, 1, 2, 3, 4, 5, 6, 7, 8, 11, 9, 10)]
            spill = False
            for ready, blk in units:
                g = max(g, ready + 4)
                for x in blk:
                    if not spill:
                        try:
                            g = place([x], g)
                            continue
                        except IndexError:
                            spill = True
                    G[n - 1].post.append(x)
                conv_first.append((ready, blk[0]))

    if first:
        q = [(set(vread(vblk[db], db, jj).w), g0 - 2) for db in range(2) for jj in range(2)]
    else:
        q = [(set(kread(B(ks), 0, ks, 0).w), -20) for ks in range(6)]
    pads = [] if first else [(6 * c + 5, G[6 * c + 8].valu[0]) for c in range(12)]
    pads += [(ones_at[qb], adds[qb]) for qb in range(6)] + conv_first
    return finish(M, G, g0, q, not last, fixed, chains, loop, pads)


def finish(M, G, g0, q, wrap, fixed, chains, loop, pads, left=None):
    n = len(M)
    for i in range(g0, n + (1 if wrap else 0)):
        need = set(M[i % n].r)
        idx = max((j for j, (w, g) in enumerate(q) if w & need), default=None)
        if idx is not None:
            assert q[idx][1] < i - 1, f"read for MFMA {i} issued too late"
            vis = [j for j, (w, g) in enumerate(q) if g < i - 1]
            idx = max([idx] + [j for j in vis if q[j][1] <= i - 9])
            cnt = len(vis) - 1 - idx
            if i == 0:
                assert cnt == 0
            else:
                assert not G[i - 1].sc or G[i - 1].sc[0].kind == "nop" or "lgkm" in G[i - 1].sc[0].text, f"scalar slot of gap {i-1} taken"
                G[i - 1].sc[:] = [Ins(f"s_waitcnt lgkmcnt({cnt})")]
            q = q[idx + 1:]
        if i < n:
            need = {r for x in G[i].mem + G[i].valu + G[i].post for r in x.r + x.w}
            idx = max((j for j, (w, g) in enumerate(q) if w & need), default=-1)
            idx = max(idx, len(q) + sum(x.kind == "ds" for x in G[i].mem) - 16)
            if idx >= 0:
                assert not G[i].sc or G[i].sc[0].kind == "nop", f"scalar slot of gap {i} taken"
                G[i].sc[:] = [Ins(f"s_waitcnt lgkmcnt({len(q) - 1 - idx})")]
                q = q[idx + 1:]
            q += [(set(x.w), i) for x in G[i].mem if x.kind == "ds"]
    if left is not None:
        left.extend(w for w, g in q)

    lo = g0
    for gs, pre in fixed:
        free = [j for j in range(lo, gs[0]) if not G[j].sc][-len(pre):]
        assert len(free) == len(pre), (gs, free)
        for j, x in zip(free, pre):
            G[j].sc.append(x)
        lo = gs[-1] + 1
    for g, chain in chains:
        span = []
        for x in chain:
            while G[g].sc:
                span.append(G[g].sc[0])
                g += 1
            G[g].sc.append(x)
            g += 1
        if any(y.op.startswith("s_cmp") for y in chain):
            assert not any(y.kind == "salu" and y.op != "s_mov_b32" for y in span), "SCC chain interleaved"
    if loop:
        G[n - 1].post.append(Ins(f"s_cbranch_scc1 {loop[0]}"))

    def pad(prod, cons, want=8):
        cons_gap = next(g for g in range(prod, n) if any(x is cons for x in G[g].seq()))

        def states():
            t = 0
            for g in range(prod, cons_gap + 1):
                if g > prod:
                    t += 1
                for x in G[g].seq():
                    if x is cons:
                        return t
                    t += x.states
        for g in range(prod, cons_gap + 1):
            if states() < want and not G[g].sc:
                G[g].sc.append(Ins("s_nop 0"))
        for g in range(prod, cons_gap):
            while states() < want and G[g].sc[0].kind == "nop" and G[g].free() > G[g].sc[0].states - 1:
                G[g].sc[0] = Ins(f"s_nop {G[g].sc[0].states}")
        assert states() >= want, (prod, cons_gap)

    for prod, cons in pads:
        pad(prod, cons)

    out = []
    for m, g in list(zip(M, G))[g0:]:
        out.append(m)
        out += g.seq()
    return out


def half_tile(cfg, qs, t, fills, vm, delta, nxt_t):
    final = nxt_t is None
    X = [P(q) for q in range(6) if q not in qs]
    M = []
    k1 = [B(6), B(7), B(8), B(9), B(0), B(1)]
    rot = [B(2), B(3), B(4)]
    sblk = {}
    for kb in range(2):
        for i, qb in enumerate(qs):
            d = P(qb) if kb == 0 else rot[i]
            sblk[kb * 3 + i] = d
            for ks in range(6):
                a = B(ks) if kb == 0 else k1[ks]
                M.append(Ins(f"{M16} {v4(d)}, {v4(a)}, {Q(qb, ks)}, {cinit(cfg) if ks == 0 else v4(d)}"))
    vblk = [X[0], X[1], X[2], B(5), B(6), B(7), B(8), B(9), X[0], X[1], X[2], B(0) if final else B(6)]
    ones_at, done_at = {}, {}

    def ones(i):
        ones_at[i] = len(M)
        M.append(Ins(f"{M16} {v4(rot[i])}, {v4(vONE)}, {v4(P(qs[i]))}, 0"))

    def run(dbs, i):
        for db in dbs[::-1 if (cfg.snake and i % 2) else 1]:
            done_at[qs[i], db] = len(M)
            M.append(Ins(f"{M16} {O4(qs[i], db)}, {v4(P(qs[i]))}, {v4(vblk[db])}, {O4(qs[i], db)}"))

    ones(0); run(range(3), 0); ones(1); run(range(3), 1); run(range(3), 2); ones(2)
    for dbs in ((range(3, 6), range(6, 12)) if final else (range(3, 6), range(6, 9), range(9, 12))):
        for i in range(3):
            run(dbs, i)
    G = [Gap() for _ in range(len(M))]
    for c in range(6):
        kb, i = divmod(c, 3)
        s = sblk[c]
        for r in range(4):
            G[6 * c + 8 + r].valu.append(Ins(f"v_exp_f32 v{s+r}, v{s+r}"))
        for h in range(2):
            G[6 * c + 12].valu.append(Ins(f"v_cvt_pk_bf16_f32 v{P(qs[i])+2*kb+h}, v{s+2*h}, v{s+2*h+1}"))
    G[43].sc.append(Ins("s_nop 0"))

    def tag(x, tt):
        x.tags["need"] = (x.tags["need"][0], tt)
        return x

    for ks, g in zip(range(6), (0, 0, 1, 1, 13, 13)):
        G[g].mem.append(tag(kread(k1[ks], 1, ks, 0), t))
    for db, g in enumerate((7, 19, 25, 31, 37, 43, 44, 46, 48, 50, 52, 54 if final else 57)):
        for jj in range(2):
            G[g].mem.append(tag(vread(vblk[db], db, jj), t))
    adds = [Ins(f"v_add_f32 v{vL+qb}, v{vL+qb}, v{rot[i]}") for i, qb in enumerate(qs)]
    for x, g in zip(adds, (45, 45, 53)):
        G[g].valu.append(x)
    fixed = []
    if not final:
        for ks, g in zip(range(6), (59, 59, 61, 61, 63, 63)):
            G[g].mem.append(tag(kread(B(ks), 0, ks, 0), nxt_t))
        G[53].valu.append(Ins(f"v_add_u32 v{vK}, {delta & 0xffffffff:#x}, v{vK}"))
        G[60].valu.append(Ins(f"v_add_u32 v{vV}, {delta & 0xffffffff:#x}, v{vV}"))
    if vm is not None:
        G[4].sc.append(Ins(f"s_waitcnt vmcnt({vm})"))
        G[4].post.append(Ins("s_barrier"))
    for (pre, ops), gs in zip(fills, [(49, 54, 56), (64, 67, 70)]):
        fixed.append((gs, pre))
        for g, x in zip(gs, ops):
            assert G[g].free() == 2, g
            G[g].mem.append(x)
    pads = [(6 * c + 5, G[6 * c + 8].valu[0]) for c in range(6)] + [(ones_at[i], adds[i]) for i in range(3)]
    return M, G, fixed, pads, done_at


def range_check(qs, tmp, first):
    l = [vL + q for q in qs]
    f1, f2 = (sFlag, sFlag2) if first else (sFlag2, sFlag3)
    return [Ins(x) for x in (f"v_max3_f32 v{tmp}, v{l[0]}, v{l[1]}, v{l[2]}", f"v_min3_f32 v{tmp+1}, v{l[0]}, v{l[1]}, v{l[2]}",
                             f"v_cmp_lt_f32 {s2(f1)}, s{sHi}, v{tmp}", f"v_cmp_gt_f32 {s2(f2)}, s{sLo}, v{tmp+1}")] + \
        [Ins(f"v_rcp_f32 v{x}, v{x}") for x in l]


class EpiRegs:
    W, BP = vT, vT1
    R, Gl, tmp = vO + 8, vO + 9, vO + 12
    inv0 = (vT2, vD)

    @staticmethod
    def inv(qb, rh):
        if qb == 0 and rh == 0:
            return EpiRegs.inv0
        base = vO + 24 + 16 * ((2 * qb + rh) % 2)
        return (base, base + 1)

    @staticmethod
    def back(qb):
        if qb == 4:
            return [vP + 4 * i for i in range(6)]
        return [vO + 48 + 24 * (qb % 2) + 4 * i for i in range(6)] if qb else [vO + x for x in (0, 4, 16, 20, 32, 36)]


def epi_addr_w():
    e = EpiRegs
    return [Ins(x) for x in (f"v_mbcnt_lo_u32_b32 v{e.BP}, -1, 0", f"v_mbcnt_hi_u32_b32 v{e.BP}, -1, v{e.BP}",
                             f"v_and_b32 v{e.W}, 15, v{e.BP}", f"v_lshlrev_b32 v{e.W}, 3, v{e.W}", f"v_and_b32 v{e.BP}, 48, v{e.BP}",
                             f"v_mad_u32_u24 v{e.W}, v{e.BP}, {4 * TRS // 16}, v{e.W}", f"v_add_u32 v{e.W}, s{sPriv}, v{e.W}")]


def epi_addr_r():
    e = EpiRegs
    ln, x, y = e.tmp, e.tmp + 1, e.R
    return [Ins(z) for z in (
        f"v_mbcnt_lo_u32_b32 v{ln}, -1, 0", f"v_mbcnt_hi_u32_b32 v{ln}, -1, v{ln}",
        f"v_bfe_u32 v{y}, v{ln}, 4, 1", f"v_lshrrev_b32 v{x}, 5, v{ln}", f"v_lshl_add_u32 v{y}, v{y}, 1, v{x}",
        f"v_bfe_u32 v{x}, v{ln}, 3, 1", f"v_lshl_add_u32 v{x}, v{y}, 1, v{x}", f"v_mul_u32_u24 v{e.Gl}, 384, v{x}",
        f"v_and_b32 v{x}, 3, v{ln}", f"v_lshl_add_u32 v{e.Gl}, v{x}, 5, v{e.Gl}",
        f"v_bfe_u32 v{x}, v{ln}, 2, 1", f"v_lshl_add_u32 v{e.Gl}, v{x}, 4, v{e.Gl}",
        f"v_bfe_u32 v{x}, v{ln}, 1, 1", f"v_lshl_add_u32 v{y}, v{y}, 1, v{x}", f"v_mul_u32_u24 v{y}, {TRS}, v{y}",
        f"v_and_b32 v{x}, 1, v{ln}", f"v_lshl_add_u32 v{y}, v{x}, 6, v{y}",
        f"v_bfe_u32 v{x}, v{ln}, 2, 2", f"v_lshl_add_u32 v{y}, v{x}, 3, v{y}", f"v_add_u32 v{y}, s{sPriv}, v{y}")]


def epi_stream(cfg, qs):
    e = EpiRegs
    res = []

    def put(seq, needs=()):
        res.extend((x, needs) for x in seq)

    def bp(qb, rh):
        put([Ins(f"ds_bpermute_b32 v{e.inv(qb, rh)[r]}, v{e.BP}, v{vL+qb} offset:{4*(2*rh + r)}") for r in range(2)])

    def conv(qb, u, rh):
        x, seq = [], []
        for j in range(4):
            f, n = O(qb, 4 * u + j)
            if f == "a":
                t = vO + 96 + 8 * ((u + 3 * rh) % 2) + 2 * j
                seq += [f"v_accvgpr_read_b32 v{t+r}, a{n+2*rh+r}" for r in range(2)]
                x.append(t)
            else:
                x.append(n + 2 * rh)
        inv = e.inv(qb, rh)
        seq += [f"v_mul_f32 v{x[j]+r}, v{inv[r]}, v{x[j]+r}" for j in range(4) for r in range(2)]
        seq += [f"v_cvt_pk_bf16_f32 v{x[0]}, v{x[0]}, v{x[1]}", f"v_cvt_pk_bf16_f32 v{x[1]}, v{x[0]+1}, v{x[1]+1}",
                f"v_cvt_pk_bf16_f32 v{x[0]+1}, v{x[2]}, v{x[3]}", f"v_cvt_pk_bf16_f32 v{x[1]+1}, v{x[2]+1}, v{x[3]+1}"]
        seq += [f"ds_write_b64 v{e.W}, {v2(x[r])} offset:{(qb % 2)*TBUF + u*TU + (2*rh + r)*TRS}" for r in range(2)]
        put([Ins(y) for y in seq], tuple((qb, 4 * u + j) for j in range(4)))

    def reads(qb):
        for i, dst in enumerate(e.back(qb)):
            h, u = divmod(i, 3)
            put([Ins(f"ds_read_b64_tr_b16 {v2(dst + 2*y)}, v{e.R} offset:{(qb % 2)*TBUF + u*TU + h*8*TRS + 32*y}") for y in range(2)])

    def stores(qb):
        for i, src in enumerate(e.back(qb)):
            h, u = divmod(i, 3)
            put([Ins(f"buffer_store_dwordx4 {v4(src)}, v{e.Gl}, {s4(sO)}, s{sOq+qb} offen offset:{h*3072 + 128*u}{cfg.stpol}")])

    us = lambda qb: (1, 2, 0) if qb == 3 else (0, 1, 2)
    prev = None
    for qb in qs:
        if prev is None:
            bp(qb, 0)
        for k, u in enumerate(us(qb)):
            conv(qb, u, 0)
            if k == 0 and prev is not None:
                stores(prev)
            if k == (2 if qb == 0 else 1):
                bp(qb, 1)
                if qb == 0:
                    put(epi_addr_r())
        for k, u in enumerate(us(qb)):
            conv(qb, u, 1)
            if k == 1 and qb != qs[-1]:
                bp(qb + 1, 0)
        reads(qb)
        prev = qb
    stores(prev)
    return res


def straight(stream, q):
    out = []
    for x in stream:
        need = set(x.r) | set(x.w)
        idx = max((j for j, w in enumerate(q) if w & need), default=None)
        if x.kind == "ds" and len(q) - (0 if idx is None else idx + 1) >= 15:
            idx = len(q) - 15
        if idx is not None:
            out.append(Ins(f"s_waitcnt lgkmcnt({len(q) - 1 - idx})"))
            del q[:idx + 1]
        out.append(x)
        if x.kind == "ds":
            q.append(set(x.w))
    return out


def tail(cfg):
    n, t0 = cfg.ntail, NT - cfg.ntail
    M, G, fixed, pads, done, chains = [], [], [], [], {}, []
    issued = 2 * (t0 - 1) + 2 * cfg.L + 1
    for qs in ((0, 1, 2), (3, 4, 5)):
        for t in range(t0, NT):
            fills, vm = [], None
            if qs[0] == 0:
                vm = 3 * (issued - min(2 * NT - 1, 2 * t + 2))
                fills = [static_fill(cfg, s) for s in range(issued + 1, min(issued + 3, 2 * NT))]
                issued += len(fills)
            nxt = t + 1 if t < NT - 1 else (t0 if qs[0] == 0 else None)
            delta = 0 if nxt is None else 2 * SLOT * (pair_of(nxt) - pair_of(t))
            m, g, f, p, d = half_tile(cfg, qs, t, fills, vm, delta, nxt)
            o = len(M)
            M += m
            G += g
            fixed += [(tuple(x + o for x in gs), pre) for gs, pre in f]
            pads += [(a + o, b) for a, b in p]
            if t == NT - 1:
                done.update({k: v + o for k, v in d.items()})
    N, H = len(M), len(M) // (2 * n)
    g1 = n * H

    def cap(g):
        return cfg.extra[(g - g1) // H] if g >= g1 else 0

    ldsat = {}

    stored = {}

    def place(x, g, extra=None):
        for r in x.r:
            g = max(g, ldsat.get(r, -99) + cfg.lat)
        for r in x.w:
            g = max(g, stored.get(r, -99) + 2)
        while g < N:
            gp = G[g]
            room = gp.free() + (cap(g) if extra is None else extra)
            ok = not gp.post and not any(y.kind == "vmem" for y in gp.mem)
            if x.kind == "vmem":
                ok = ok and (room >= 2 or (room >= cfg.st_room and cap(g))) and not any(y.tags.get("bg") for y in gp.mem + gp.valu)
            else:
                ok = ok and room >= x.vslots
            if x.kind == "ds":
                ok = ok and not any(y.tags.get("bg") for y in gp.valu)
            if ok:
                x.tags["bg"] = True
                if x.kind == "vmem":
                    gp.mem.insert(0, x)
                    stored.update({r: g for r in x.store_data})
                else:
                    (gp.mem if x.kind == "ds" else gp.valu).append(x)
                for r in x.w:
                    ldsat.pop(r, None)
                if x.kind == "ds":
                    ldsat.update({r: g for r in x.w})
                return g + (1 if x.kind in ("trans", "vmem") else 0)
            g += 1
        return None

    g = g1 - H + 2
    for x in epi_addr_w():
        g = place(x, g)
    g = g1 - H + 55
    for x in range_check((0, 1, 2), B(4) + 1, True):
        g = place(x, g)
    chains.append((g + 2, [Ins(f"s_or_b64 {s2(sFlag)}, {s2(sFlag)}, {s2(sFlag2)}")]))
    ge = N - H + 55
    for x in range_check((3, 4, 5), B(4) + 1, False):
        ge = place(x, ge)
    chains.append((ge + 2, [Ins(f"s_or_b64 {s2(sFlag2)}, {s2(sFlag2)}, {s2(sFlag3)}"), Ins(f"s_or_b64 {s2(sFlag)}, {s2(sFlag)}, {s2(sFlag2)}")]))
    rest = []
    state = {"g": g, "gs": 0}

    def feed(stream):
        for x, needs in stream:
            if state["g"] is not None:
                ready = max([done[b] for b in needs], default=-9)
                g = state["g"]
                g2 = place(x, max(state["gs"], g + 1) if x.kind == "vmem" else max(g, ready + 4))
                if g2 is not None:
                    if needs and x.kind == "valu":
                        pads.append((ready, x))
                    if x.kind == "vmem":
                        state["gs"] = g2 + cfg.st_gap
                    else:
                        state["g"] = g2
                    continue
                state["g"] = None
            rest.append(x)

    feed(epi_stream(cfg, (0, 1, 2)))
    if cfg.migrate and state["g"] is not None:
        spare = [vO + 96 + 16 + 4 * i for i in range(8)] + [vO + x for x in (0, 4, 12, 16, 20, 28, 32, 36, 44)] + [vO + 48 + 4 * i for i in range(6)]
        uses = {}
        for i in range(g1, N):
            if M[i].w[0][0] == "a":
                uses.setdefault(int(M[i].w[0][1:]), []).append(i)
        groups = [(qb, u) for qb, u in ((3, 0), (4, 0), (4, 1), (4, 2), (5, 0), (5, 1), (5, 2))]
        g = state["g"]
        for qb, u in groups[:len(spare) // 4]:
            blocks = [(qb, 4 * u + j) for j in range(4)]
            snap = ([(list(x.mem), list(x.valu)) for x in G], dict(ldsat), list(M), list(pads))
            okay = True
            for blk in blocks:
                an, dst = O(*blk)[1], spare[0]
                for k in range(len(uses[an]) - 1):
                    lo, hi = uses[an][k], uses[an][k + 1]
                    if hi - 3 < state["g"]:
                        continue
                    trial = [Ins(f"v_accvgpr_read_b32 v{dst+r}, a{an+r}") for r in range(4)]
                    gg, at = max(state["g"], lo + 4), []
                    for x in trial:
                        gg = place(x, gg, cfg.mig_extra)
                        at.append(gg)
                        if gg is None:
                            break
                    if at[-1] is not None and at[-1] <= hi - 2:
                        pads.extend((lo, x) for x in trial)
                        for i in uses[an][k + 1:]:
                            M[i] = Ins(M[i].text.replace(f"a[{an}:{an+3}]", v4(dst)))
                        MOVED[blk] = spare.pop(0)
                        break
                    for gp in G:
                        gp.valu[:] = [y for y in gp.valu if not any(y is x for x in trial)]
                else:
                    okay = False
                    break
            if not okay:
                for gp, (mm, vv) in zip(G, snap[0]):
                    gp.mem[:], gp.valu[:] = mm, vv
                M[:] = snap[2]
                pads[:] = snap[3]
                for blk in blocks:
                    if blk in MOVED:
                        spare.insert(0, MOVED.pop(blk))
                break
    if state["g"] is not None:
        state["g"] = max(state["g"], ge + 1)
    feed(epi_stream(cfg, (3, 4, 5)))
    print("  moved accumulator blocks:", len(MOVED))
    MOVED.clear()
    if cfg.pk_tail:
        merged = []
        for x in rest:
            p = merged[-1] if merged else None
            if p is not None and p.op == x.op == "v_mul_f32":
                d, a = int(p.w[0][1:]), int(p.r[0][1:])
                if d % 2 == 0 and a % 2 == 0 and x.w == [f"v{d+1}"] and x.r[0] == f"v{a+1}":
                    merged[-1] = Ins(f"v_pk_mul_f32 {v2(d)}, {v2(a)}, {v2(d)}")
                    continue
            merged.append(x)
        rest = merged
    q = [(set(kread(B(ks), 0, ks, 0).w), -20) for ks in range(6)]
    left = []
    body = finish(M, G, 0, q, False, fixed, chains, None, pads, left)
    return body, rest, left


def lane_addrs(a, kbase, vbase):
    a(f"v_mbcnt_lo_u32_b32 v{vT}, -1, 0")
    a(f"v_mbcnt_hi_u32_b32 v{vT}, -1, v{vT}")
    a(f"v_and_b32 v{vT1}, 3, v{vT}")
    a(f"v_mul_u32_u24 v{vK}, {RG}, v{vT1}")
    a(f"v_lshlrev_b32 v{vV}, 3, v{vT1}")
    a(f"v_bfe_u32 v{vT1}, v{vT}, 2, 2")
    a(f"v_mul_u32_u24 v{vT2}, 384, v{vT1}")
    a(f"v_add_u32 v{vK}, v{vK}, v{vT2}")
    a(f"v_mul_u32_u24 v{vT2}, {RG}, v{vT1}")
    a(f"v_add_u32 v{vV}, v{vV}, v{vT2}")
    a(f"v_lshrrev_b32 v{vT1}, 4, v{vT}")
    a(f"v_lshl_add_u32 v{vK}, v{vT1}, 4, v{vK}")
    a(f"v_mul_u32_u24 v{vT2}, 384, v{vT1}")
    a(f"v_add_u32 v{vV}, v{vV}, v{vT2}")
    a(f"v_add_u32 v{vK}, {kbase}, v{vK}")
    a(f"v_add_u32 v{vV}, {vbase}, v{vV}")


def zero_acc(a):
    for qb in range(6):
        a(f"v_mov_b32 v{vL+qb}, 0")
    for qb in range(6):
        for db in range(12):
            f, n = O(qb, db)
            for r in range(4):
                a(f"v_mov_b32 v{n+r}, 0" if f == "v" else f"v_accvgpr_write_b32 a{n+r}, 0")


def prologue(cfg):
    out = []
    vmq = []

    def a(t, **k):
        x = Ins(t, **k)
        out.append(x)
        if x.kind == "vmem":
            vmq.append(k.get("vtag"))

    def wait_for(tag):
        last = max(i for i, t in enumerate(vmq) if t == tag)
        a(f"s_waitcnt vmcnt({len(vmq) - 1 - last})")
        del vmq[:last + 1]

    a("s_cmp_ge_u32 s2, 256")
    a("s_cbranch_scc1 L_end")
    a("s_load_dwordx4 s[4:7], s[0:1], 0")
    a("s_load_dwordx4 s[8:11], s[0:1], 16")
    if cfg.stamps:
        a(f"s_load_dwordx2 {s2(sWs)}, s[0:1], 40")
        a(f"s_memrealtime {s2(sT0)}")
    a(f"s_getpc_b64 {s2(sC)}")
    a("L_pc:")
    a(f"s_and_b32 s{sC+1}, s{sC+1}, 0xffff")
    a(f"s_mov_b32 s{sC+2}, {cfg.pf_bytes if cfg.pf_bytes else 'L_slow-L_pc'}")
    a(f"s_mov_b32 s{sC+3}, 0x20000")
    a(f"v_lshlrev_b32 v{vT1}, 7, v0")
    a(f"buffer_load_dword v{vT2}, v{vT1}, {s4(sC)}, 0 offen", vtag="pf")
    a(f"v_lshrrev_b32 v{vK}, 6, v0")
    a(f"v_and_b32 v{vD}, 63, v0")
    a(f"v_readfirstlane_b32 s{sW}, v{vK}")
    a(f"v_lshlrev_b32 v{vD}, 4, v{vD}")
    a(f"s_mul_i32 s{sTmp}, s2, 147456")
    a(f"s_mul_i32 s{sTmp2}, s2, 393216")
    a(f"s_mul_i32 s{sG0}, s{sW}, 3072")
    a(f"s_mul_i32 s{sM0}, s{sW}, {RG}")
    a(f"s_mul_i32 s{sOo}, s{sW}, 36864")
    a(f"s_add_u32 m0, s{sM0}, {2*pair_of(0)*SLOT}")
    for r, n in ((sK, 393216), (sQ, 147456), (sV, 393216), (sO, 147456)):
        a(f"s_mov_b32 s{r+2}, {n}")
        a(f"s_mov_b32 s{r+3}, 0x20000")
    a("s_waitcnt lgkmcnt(0)")

    def srd(r, lo, off):
        a(f"s_add_u32 s{r}, s{lo}, s{off}")
        a(f"s_addc_u32 s{r+1}, s{lo+1}, 0")
        a(f"s_and_b32 s{r+1}, s{r+1}, 0xffff")

    srd(sK, 6, sTmp2)
    for p in range(3):
        a(f"buffer_load_dwordx4 v{vD}, {s4(sK)}, s{sG0} offen offset:{p*1024}{cfg.ldpol} lds",
          fill=("K", 0, p, lambda t: 2 * pair_of(0)), vtag="K0")
    srd(sQ, 4, sTmp)

    def q_region(j):
        pre = [Ins(f"s_add_u32 s{sTmp}, s{sOo}, {j*3072}", sets=("Q", j)), Ins(f"s_add_u32 m0, s{sM0}, {(QSLOT[j // 2] + j % 2)*SLOT}", sets=("Q", j))]
        ops = [Ins(f"buffer_load_dwordx4 v{vD}, {s4(sQ)}, s{sTmp} offen offset:{p*1024}{cfg.ldpol} lds",
                   fill=("Q", j, p, lambda t, j=j: QSLOT[j // 2] + j % 2), vtag=("Q", j // 2), uses=((f"s{sTmp}", ("Q", j)), ("m0", ("Q", j))))
               for p in range(3)]
        return pre, ops

    srd(sV, 8, sTmp2)
    srd(sO, 10, sTmp)
    pending = [q_region(j) for j in range(12)] + [static_fill(cfg, s) for s in range(1, cfg.pro_last + 1)]
    stream = []
    for pre, ops in pending:
        stream += [pre + [Ins("s_nop 0"), ops[0]], [ops[1]], [ops[2]]]

    def issue(k):
        for _ in range(min(k, len(stream))):
            for x in stream.pop(0):
                a(x.text, **x.tags)

    issue(3 * cfg.win)
    npeel = len(cfg.ramp)
    a(f"s_mov_b32 s{sScale}, {f32(math.log2(math.e) / math.sqrt(192.0))}")
    a(f"s_mov_b32 s{sMask}, 0xffff0000")
    a(f"s_mov_b32 s{sHi}, {f32(cfg.hi)}")
    a(f"s_mov_b32 s{sLo}, {f32(cfg.lo)}")
    a(f"s_mov_b32 s{sUnit}, {f32(1.0 / unit(cfg))}")
    a(f"s_mov_b32 s{sFwd}, {2*SLOT}")
    a(f"s_mov_b32 s{sBack}, {(-10*SLOT) & 0xffffffff:#x}")
    a(f"s_add_u32 s{sMw}, s{sM0}, {10*SLOT}")
    a(f"s_add_u32 s{sMd}, s{sM0}, {2*pair_of(npeel + cfg.L)*SLOT}")
    a(f"s_add_u32 s{sGd}, s{sG0}, {(npeel + cfg.L)*12288}")
    a(f"s_mul_i32 s{sPriv}, s{sW}, {PRIVSZ}")
    a(f"s_add_u32 s{sPriv}, s{sPriv}, {PRIV0}")
    a(f"s_mov_b32 s{sRd}, {2*pair_of(0)*SLOT}")
    a(f"s_mov_b32 s{sCnt}, {npeel}")
    for qb in range(6):
        a(f"s_add_u32 s{sOq+qb}, s{sOo}, {qb*6144}")
    a(f"s_mov_b32 s{sTmp2}, 384")
    wait_for("pf")
    lane_addrs(a, 2 * pair_of(0) * SLOT, (2 * pair_of(0) + 1) * SLOT)
    a(f"v_bfe_u32 v{vT1}, v{vT}, 3, 1")
    a(f"v_mul_u32_u24 v{vT1}, {SLOT}, v{vT1}")
    a(f"v_and_b32 v{vT2}, 7, v{vT}")
    a(f"v_mul_u32_u24 v{vT2}, 384, v{vT2}")
    a(f"v_add_u32 v{vT1}, v{vT1}, v{vT2}")
    a(f"v_lshrrev_b32 v{vT2}, 4, v{vT}")
    a(f"v_lshl_add_u32 v{vT1}, v{vT2}, 4, v{vT1}")
    a(f"s_add_u32 s{sDel}, s{sM0}, {QSLOT[0]*SLOT}")
    a(f"v_add_u32 v{vT}, s{sDel}, v{vT1}")
    for r in range(4):
        a(f"v_mov_b32 v{vONE+r}, {unit_bits(cfg):#x}")
    kf, qs, ct, s1 = vO, vO + 48, vO + 72, vO + 80
    wait_for("K0")
    a("s_barrier")
    for i in range(12):
        out.append(kread(kf + 4 * i, i // 6, i % 6, 0))
    for qb in range(6):
        if cfg.probe and qb == cfg.probe - 1:
            a(f"s_memrealtime {s2(sC0)}")
        wait_for(("Q", qb))
        if cfg.probe and qb == cfg.probe - 1:
            a(f"s_memrealtime {s2(sT1)}")
            a("s_waitcnt lgkmcnt(0)")
        if qb == 0:
            a("s_waitcnt lgkmcnt(0)")
        for ks in range(6):
            a(f"ds_read_b128 {v4(qs + 4*ks)}, v{vT} offset:{ks*64}", need=("Q", 2 * qb), own=True)
        if qb < 5:
            a(f"v_add_u32 v{vT}, {((QSLOT[qb+1] - QSLOT[qb])*SLOT) & 0xffffffff:#x}, v{vT}")
        for ks in range(6):
            a(f"s_waitcnt lgkmcnt({5 - ks})")
            issue(1)
            for j in range(4):
                src, t = qs + 4 * ks + j, ct + 2 * j
                a(f"v_lshlrev_b32 v{t}, 16, v{src}")
                a(f"v_and_b32 v{t+1}, s{sMask}, v{src}")
                a(f"v_mul_f32 v{t}, s{sScale}, v{t}")
                a(f"v_mul_f32 v{t+1}, s{sScale}, v{t+1}")
                if ks and j < 2:
                    d = P(qb) if j == 0 else s1
                    a(f"{M16} {v4(d)}, {v4(kf + 24*j + 4*(ks-1))}, {Q(qb, ks-1)}, {cinit(cfg) if ks == 1 else v4(d)}")
            for j in range(4):
                a(f"v_cvt_pk_bf16_f32 v{ct+2*j}, v{ct+2*j}, v{ct+2*j+1}")
            for j in range(4):
                a(f"v_accvgpr_write_b32 a{qb*24+4*ks+j}, v{ct+2*j}")
        a("s_nop 1")
        for j in range(2):
            d = P(qb) if j == 0 else s1
            a(f"{M16} {v4(d)}, {v4(kf + 24*j + 20)}, {Q(qb, 5)}, {v4(d)}")
        a("s_nop 6")
        for d in (P(qb), s1):
            for r in range(4):
                a(f"v_exp_f32 v{d+r}, v{d+r}")
        for h in range(2):
            a(f"v_cvt_pk_bf16_f32 v{P(qb)+h}, v{P(qb)+2*h}, v{P(qb)+2*h+1}")
        for h in range(2):
            a(f"v_cvt_pk_bf16_f32 v{P(qb)+2+h}, v{s1+2*h}, v{s1+2*h+1}")
        if cfg.probe and qb == cfg.probe - 1:
            a(f"s_memrealtime {s2(sT2)}")
            a("s_waitcnt lgkmcnt(0)")
    issue(99)
    if cfg.stamps and not cfg.probe:
        a(f"s_memrealtime {s2(sT1)}")
        a(f"s_memtime {s2(sC0)}")
        a("s_waitcnt lgkmcnt(0)")
    wait_for(("S", 1))
    a("s_barrier")
    if cfg.probe:
        a(f"s_memrealtime {s2(sT3)}")
        a("s_waitcnt lgkmcnt(0)")
    for db, blk in ((0, B(5)), (1, B(6))):
        for jj in range(2):
            out.append(vread(blk, db, jj))
    return out


def epilogue_swap(cfg):
    out, q = [], []

    def emit(seq):
        for x in seq:
            need = set(x.r) | set(x.w)
            idx = max((j for j, w in enumerate(q) if w and w & need), default=None)
            if x.tags.get("after_writes"):
                idx = max([j for j, w in enumerate(q) if w is None] + ([idx] if idx is not None else []), default=None)
            if x.kind == "ds" and len(q) - (0 if idx is None else idx + 1) >= 15:
                idx = len(q) - 15
            if idx is not None:
                out.append(Ins(f"s_waitcnt lgkmcnt({len(q) - 1 - idx})"))
                del q[:idx + 1]
            out.append(x)
            if x.kind == "ds":
                q.append(set(x.w) if x.w else None)

    def rb(qb):
        return vP if qb == 0 else vO + 24 * (qb % 2)

    def reads(qb):
        res = []
        for i in range(6):
            h, u = divmod(i, 3)
            for y in range(2):
                res.append(Ins(f"ds_read_b64_tr_b16 {v2(rb(qb) + 4*i + 2*y)}, v{vV} offset:{(qb % 3)*TBUF + u*TU + h*8*TRS + 32*y}",
                               after_writes=(cfg.wr_wait and i == 0 and y == 0)))
        return res

    def stores(qb):
        res = []
        for i in range(6):
            h, u = divmod(i, 3)
            res.append(Ins(f"buffer_store_dwordx4 {v4(rb(qb) + 4*i)}, v{vT}, {s4(sO)}, s{sOo} offen offset:{h*3072 + 128*u}{cfg.stpol}"))
        if qb < 5:
            res.append(Ins(f"s_add_u32 s{sOo}, s{sOo}, 6144"))
        return res

    def units(qb):
        return [conv_half(qb, u, rh) for u in range(3) for rh in range(2)]

    out.append(Ins("s_waitcnt lgkmcnt(0)" if cfg.wr_wait else "s_waitcnt lgkmcnt(3)"))
    if not cfg.wr_wait:
        q.extend([None] * 3)
    if not cfg.overlap_epi:
        emit(bperm(0))
        for x in units(0):
            emit(x)
    emit(bperm(1))
    for qb in range(6):
        emit(reads(qb))
        nxt = units(qb + 1) if qb < 5 else []
        for x in nxt[:1]:
            emit(x)
        emit(stores(qb))
        for x in nxt[1:]:
            emit(x)
        if qb < 4:
            emit(bperm(qb + 2))
    return out


def epilogue(cfg, nq=6):
    if cfg.swap:
        return epilogue_swap(cfg)
    out = []

    def a(t, **k):
        out.append(Ins(t, **k))

    def conv(qb, dbs):
        for db in dbs:
            out.extend(conv_block(cfg, qb, db, cfg.pkmul))

    def rb(qb):
        return vP if qb % 2 == 0 else vB

    def reads(qb):
        buf = (qb % 4) * 16 * STG
        for i in range(6):
            h, t = divmod(i, 3)
            a(f"ds_read_b128 {v4(rb(qb) + 4*i)}, v{vV} offset:{buf + h*8*STG + 128*t}")

    def stores(qb):
        for i in range(6):
            h, t = divmod(i, 3)
            a(f"buffer_store_dwordx4 {v4(rb(qb) + 4*i)}, v{vT}, {s4(sO)}, s{sOo} offen offset:{h*3072 + 128*t}{cfg.stpol}")
        if qb < nq - 1:
            a(f"s_add_u32 s{sOo}, s{sOo}, 6144")

    if not cfg.overlap_epi:
        conv(0, range(12))
    for qb in range(nq):
        a("s_waitcnt lgkmcnt(0)")
        reads(qb)
        if qb < nq - 1:
            conv(qb + 1, range(0, 3))
            a("s_waitcnt lgkmcnt(3)")
        else:
            a("s_waitcnt lgkmcnt(0)")
        stores(qb)
        if qb < nq - 1:
            conv(qb + 1, range(3, 12))
    return out


def slow_path(cfg):
    parts = []
    out = []

    def a(t, **k):
        out.append(Ins(t, **k))

    def cut():
        parts.append(list(out))
        out.clear()

    m = [B(9), B(9) + 1, B(9) + 2, B(9) + 3, vT1, vT2]
    S = B(6)

    def load(srd, base):
        for rg in range(4):
            a(f"s_add_u32 m0, s{sPriv}, {base + rg*RG}")
            a(f"s_add_u32 s{sTmp}, s{sGd}, {rg*3072}")
            for p in range(3):
                a(f"buffer_load_dwordx4 v{vD}, {s4(srd)}, s{sTmp} offen offset:{p*1024} lds")

    def kfrags(kb):
        for ks in range(6):
            a(f"ds_read_b128 {v4(B(ks))}, v{vK} offset:{kb*1536 + ks*64}")
        a("s_waitcnt lgkmcnt(0)")

    def chain(qb):
        for ks in range(6):
            a(f"{M16} {v4(S)}, {v4(B(ks))}, {Q(qb, ks)}, {'0' if ks == 0 else v4(S)}")
        a("s_nop 7")

    a("L_slow:")
    a("s_waitcnt lgkmcnt(0)")
    a("s_nop 7")
    lane_addrs(a, f"s{sPriv}", f"s{sPriv}")
    a(f"v_lshlrev_b32 v{vD}, 4, v{vT}")
    a(f"v_xor_b32 v{vP}, 16, v{vT}")
    a(f"v_lshlrev_b32 v{vP}, 2, v{vP}")
    a(f"v_xor_b32 v{vP+1}, 32, v{vT}")
    a(f"v_lshlrev_b32 v{vP+1}, 2, v{vP+1}")
    for qb in range(6):
        a(f"v_mov_b32 v{m[qb]}, 0xff800000")
    a(f"s_mov_b32 s{sGd}, 0")
    cut()
    a("L_slow_max:")
    load(sK, 0)
    a("s_waitcnt vmcnt(0)")
    for kb in range(2):
        kfrags(kb)
        for qb in range(6):
            chain(qb)
            a(f"v_max3_f32 v{m[qb]}, v{m[qb]}, v{S}, v{S+1}")
            a(f"v_max3_f32 v{m[qb]}, v{m[qb]}, v{S+2}, v{S+3}")
    a(f"s_add_u32 s{sGd}, s{sGd}, 12288")
    a(f"s_cmp_lt_u32 s{sGd}, 393216")
    a("s_cbranch_scc1 L_slow_max")
    cut()
    for x in range(2):
        for qb in range(6):
            a(f"ds_bpermute_b32 v{vP+4+qb}, v{vP+x}, v{m[qb]}")
        a("s_waitcnt lgkmcnt(0)")
        for qb in range(6):
            a(f"v_max_f32 v{m[qb]}, v{m[qb]}, v{vP+4+qb}")
    zero_acc(a)
    a(f"s_mov_b32 s{sGd}, 0")
    cut()
    a("L_slow_main:")
    load(sK, 0)
    a("s_waitcnt vmcnt(0)")
    for kb in range(2):
        kfrags(kb)
        for qb in range(6):
            chain(qb)
            for r in range(4):
                a(f"v_sub_f32 v{S+r}, v{S+r}, v{m[qb]}")
            for r in range(4):
                a(f"v_exp_f32 v{S+r}, v{S+r}")
            a("s_nop 0")
            for h in range(2):
                a(f"v_cvt_pk_bf16_f32 v{P(qb)+2*kb+h}, v{S+2*h}, v{S+2*h+1}")
    load(sV, 0)
    a("s_waitcnt vmcnt(0)")
    for qb in range(6):
        a(f"{M16} {v4(S)}, {v4(vONE)}, {v4(P(qb))}, 0")
        a("s_nop 7")
        a(f"v_add_f32 v{vL+qb}, v{vL+qb}, v{S}")
    for db in range(12):
        t = B(7 + db % 2)
        for jj in range(2):
            a(f"ds_read_b64_tr_b16 {v2(t + 2*jj)}, v{vV} offset:{jj*1536 + db*32}")
        a("s_waitcnt lgkmcnt(0)")
        for qb in range(6):
            x, y = (v4(P(qb)), v4(t)) if cfg.swap else (v4(t), v4(P(qb)))
            a(f"{M16} {O4(qb, db)}, {x}, {y}, {O4(qb, db)}")
    a(f"s_add_u32 s{sGd}, s{sGd}, 12288")
    a(f"s_cmp_lt_u32 s{sGd}, 393216")
    a("s_cbranch_scc1 L_slow_main")
    cut()
    for qb in range(6):
        if cfg.bias:
            a(f"v_mul_f32 v{vL+qb}, s{sUnit}, v{vL+qb}")
    for qb in range(6):
        a(f"v_rcp_f32 v{vL+qb}, v{vL+qb}")
    out.extend(straight(epi_addr_w() + [x for x, _ in epi_stream(cfg, range(6))], []))
    a("s_branch L_fin")
    cut()
    return parts


def build(cfg):
    L, npeel = cfg.L, len(cfg.ramp)
    assert cfg.ramp[-1] == 2 * (npeel - 1) + 2 * L + 1
    pro = prologue(cfg)
    issued = cfg.pro_last
    head = []
    for t, upto in enumerate(cfg.ramp):
        fills = [static_fill(cfg, s) for s in range(issued + 1, upto + 1)]
        if t == 0:
            probe = tile(cfg, "first", fills, 0)
            before = sum(1 for x in probe[:next(i for i, x in enumerate(probe) if x.kind == "barrier")] if x.kind == "vmem")
            head.append(tile(cfg, "first", fills, 3 * (issued - 2) + before))
        else:
            head.append(tile(cfg, "mid", fills, 3 * (issued - (2 * t + 2))))
        issued = upto
    body = tile(cfg, "mid", [dyn_fill(cfg, 0), dyn_fill(cfg, 1)], 3 * (2 * L - 3), loop=("L_loop", NT - cfg.ntail))
    tail_body, rest, left = tail(cfg)
    tails = [tail_body]
    mid = []
    if cfg.stamps and not cfg.probe:
        mid += [Ins("s_waitcnt lgkmcnt(0)"), Ins(f"s_memrealtime {s2(sT2)}"), Ins(f"s_memtime {s2(sC1)}"), Ins("s_waitcnt lgkmcnt(0)")]
    if cfg.force_slow:
        mid += [Ins("s_branch L_slow")]
    else:
        mid += [Ins(f"s_cmp_lg_u64 {s2(sFlag)}, 0"), Ins("s_cbranch_scc1 L_slow")]
    if cfg.stamps and not cfg.probe:
        left = []
    epi = straight(rest, left)
    fin = []
    if cfg.stamps:
        fin = [Ins(x) for x in (
            "s_waitcnt vmcnt(0)", "s_nop 0" if cfg.probe else f"s_memrealtime {s2(sT3)}", "s_waitcnt lgkmcnt(0)",
            f"s_and_b32 s{sWs+1}, s{sWs+1}, 0xffff", f"s_mov_b32 s{sWs+2}, 402653184", f"s_mov_b32 s{sWs+3}, 0x20000",
            f"s_lshl_b32 s{sTmp}, s2, 2", f"s_add_u32 s{sTmp}, s{sTmp}, s{sW}", f"s_lshl_b32 s{sTmp}, s{sTmp}, 5",
            f"s_mov_b32 s{sC1}, s{sC0}" if cfg.probe else f"s_sub_u32 s{sC1}, s{sC1}, s{sC0}",
            f"v_mov_b32 v16, s{sT0}", f"v_mov_b32 v17, s{sT1}", f"v_mov_b32 v18, s{sT2}", f"v_mov_b32 v19, s{sT3}",
            f"v_mov_b32 v20, s{sC1}", "v_mov_b32 v21, 0", "s_mov_b64 exec, 1",
            f"buffer_store_dwordx4 v[16:19], v21, {s4(sWs)}, s{sTmp} offen",
            f"buffer_store_dword v20, v21, {s4(sWs)}, s{sTmp} offen offset:16")]
    if cfg.diag_until:
        fin = [Ins(x) for x in ("s_waitcnt vmcnt(0)", "L_diag:", f"s_memrealtime {s2(sT3)}", "s_waitcnt lgkmcnt(0)",
                                f"s_sub_u32 s{sTmp}, s{sT3}, s{sT0}", f"s_cmp_lt_u32 s{sTmp}, {cfg.diag_until}", "s_cbranch_scc1 L_diag")]
    fin = [Ins("L_fin:")] + fin
    end = [Ins("L_end:"), Ins("s_endpgm")]
    slow = slow_path(cfg)

    trace = []
    for x in pro:
        trace.append((x, 0))
        if x.kind == "ds" and x.tags.get("need", ("",))[0] == "Q" and "offset:0" in x.text:
            trace.append((Ins("", ghost_need=("Q", x.tags["need"][1] + 1)), 0))
    for t, tl in enumerate(head):
        trace += [(x, t) for x in tl]
    for t in range(npeel, NT - cfg.ntail):
        trace += [(x, t) for x in body]
    trace += [(x, 0) for x in tail_body]
    errs = verify(trace + [(x, 0) for x in mid + epi + fin], "fast")
    errs += verify(trace + [(x, 0) for x in mid + slow[0] + slow[1] * 2 + slow[2] + slow[3] * 2 + slow[4] + fin], "slow")
    rep = [gap_report(x) for x in head + [body] + tails]
    text = []
    flat = lambda xs: [y for x in xs for y in x]
    for x in pro + flat(head) + [Ins(".p2align 6"), Ins("L_loop:")] + body + flat(tails) + mid + epi + fin + end + flat(slow):
        if x.text:
            text.append(x.text if x.is_label else "    " + x.text)
    asm = HEADER.format(grid=256, block=256, lds=163840) + "\n".join(text) + "\n" + \
        FOOTER.format(nvgpr=512, nsgpr=102, accum=256, extra="")
    print("  instructions after the last MFMA:", len(epi), " stores under MFMA cover:", sum(hasattr(x, "store_data") for x in tail_body))
    return asm, errs, rep


if __name__ == "__main__":
    cfg = Cfg()
    outp = sys.argv[1]
    for kv in sys.argv[2:]:
        k, v = kv.split("=", 1)
        old = getattr(cfg, k)
        setattr(cfg, k, (" " + v if v else "") if isinstance(old, str) else (eval(v) if isinstance(old, tuple) else type(old)(eval(v))))
    asm, errs, rep = build(cfg)
    for e in errs[:30]:
        print("HAZARD", e)
    print(f"{outp}: {len(errs)} hazards; tile model cycles {[r[0] for r in rep]}; over-full {[len(r[1]) for r in rep]}")
    open(outp, "w").write(asm)
```
